```python
import torch

def _softmax(x, axis=-1):
    return torch.softmax(x, dim=axis)
def _gelu(x):
    return torch.nn.functional.gelu(x, approximate="tanh")
def _silu(x):
    return torch.nn.functional.silu(x)
def _sigmoid(x):
    return torch.sigmoid(x)
def _layernorm(x, axis=-1, eps=1e-5):
    m = x.mean(dim=axis, keepdim=True)
    v = x.var(dim=axis, keepdim=True, unbiased=False)
    return (x - m) / torch.sqrt(v + eps)
def _scatter_add(tgt, idx, src, axis=0):
    return tgt.clone().index_add_(axis, idx, src)
def _segment_sum(src, seg, n):
    out = torch.zeros((n,) + src.shape[1:], dtype=src.dtype)
    return out.index_add_(0, seg, src)
def _pad(x, pw):
    flat = tuple(v for pair in reversed(pw) for v in pair)
    return torch.nn.functional.pad(x, flat)

kernel_name = 'gather_scatter__kernel_systems_refs_featgraph__graph'

def setup_inputs():

    _w = (lambda a: (lambda t: t.to(torch.bfloat16) if t.is_floating_point() else t)(torch.as_tensor(a)))
    N, deg, D = 10000, 64, 64
    E = N * deg
    scale = D ** -0.5
    src = (lambda lo, hi, *s: torch.randint(lo, hi, s))(0, N, E).to(torch.int64)
    dst = (lambda lo, hi, *s: torch.randint(lo, hi, s))(0, N, E).to(torch.int64)
    return {
        "x": _w((lambda *s: torch.randn(*s, dtype=torch.bfloat16) * 0.8)(N, D)),
        "src": _w(src),
        "dst": _w(dst),
        "w_q": _w((lambda *s: torch.randn(*s, dtype=torch.bfloat16) * 0.8)(D, D) * scale),
        "w_v": _w((lambda *s: torch.randn(*s, dtype=torch.bfloat16) * 0.05)(D, D) * scale),
    }

def reference(x, src, dst, w_q, w_v):
    N, D = x.shape
    xs = x[src]
    xd = x[dst]
    q = xd @ w_q
    logits = torch.einsum('ed,ed->e', xs, q) * (float(D) ** -0.5)
    alpha = _sigmoid(logits)
    msg = alpha[:, None] * (xs @ w_v)
    return _segment_sum(msg, dst, N)
```

```python
import sys, math, struct
OUT = sys.argv[1] if len(sys.argv) > 1 else "k.s"
PREFETCH = int(sys.argv[2]) if len(sys.argv) > 2 else 1

L = []
def A(s):
    for line in s.split("\n"):
        L.append(line)

def f32(x):
    return "0x%08x" % struct.unpack("<I", struct.pack("<f", x))[0]

HDR = """; Kernarg layout for this problem (64 bytes, ptrs only, base s[0:1]):
; gathers x[src], does the edge attention and the aggregation, then applies w_v."""

WS_TABLE = 0x280000
WS_FRAGS = 0x2C0000
WS_END = 0x2C4000
K1_LDS = 1024 + 2560 * 4
CAP = 768
QT = 0
WV = QT + 48 * 256
PT = WV + 8192
CNT = PT + 16384
LISTS = CNT + 256
SLAB = LISTS + 5 * CAP * 4
SROW = 272
SSZ = 8 * SROW
AGG = SLAB + 32 * SSZ
AROW = 144
ALO = 48 * AROW
K2_LDS = AGG + 2 * ALO
assert LISTS + 4 * CAP * 4 + 8192 * 4 <= K2_LDS
assert K2_LDS <= 163840

A(HDR)
A(f"; @launch kernel=part_kernel grid=(258,1,1) block=(640,1,1) lds={K1_LDS}")
A(f"; @launch kernel=agg_kernel grid=(256,1,1) block=(1024,1,1) lds={K2_LDS}")
A('.amdgcn_target "amdgcn-amd-amdhsa--gfx950"')
A(".text")

def srd(d, lo, hi, n):
    A(f"s_mov_b32 s{d}, s{lo}\ns_mov_b32 s{d+1}, s{hi}\ns_mov_b32 s{d+2}, {n}\ns_mov_b32 s{d+3}, 0x20000")

A(""".globl part_kernel
.p2align 8
.type part_kernel,@function
part_kernel:
s_cmp_ge_u32 s2, 258
s_cbranch_scc1 P_end
s_load_dwordx4 s[4:7], s[0:1], 0
s_load_dwordx4 s[8:11], s[0:1], 16
s_load_dwordx2 s[12:13], s[0:1], 32
s_load_dwordx2 s[14:15], s[0:1], 56
s_cmp_ge_u32 s2, 256
s_cbranch_scc1 P_frag
v_lshlrev_b32 v1, 4, v0
v_lshlrev_b32 v2, 2, v0
v_mov_b32 v3, 0
s_mul_i32 s3, s2, 10000
ds_write_b32 v2, v3
s_waitcnt lgkmcnt(0)""")
srd(16, 8, 9, 2560000)
srd(20, 6, 7, 2560000)
A("buffer_load_dwordx4 v[4:7], v1, s[16:19], s3 offen")
A("buffer_load_dwordx4 v[8:11], v1, s[20:23], s3 offen")
srd(24, 4, 5, 1280000)
if PREFETCH:
    A("s_lshr_b32 s36, s2, 3\ns_mul_i32 s36, s36, 40000\nv_lshlrev_b32 v3, 6, v0")
    A("buffer_load_dword v12, v3, s[24:27], s36 offen")
srd(28, 14, 15, 2560000)
A(f"s_add_u32 s32, s14, {WS_TABLE}\ns_addc_u32 s33, s15, 0\ns_mov_b32 s34, 256000\ns_mov_b32 s35, 0x20000")
A("""s_and_b32 s37, s2, 7
s_lshl_b32 s37, s37, 5
s_lshr_b32 s38, s2, 3
s_add_u32 s37, s37, s38
s_mul_i32 s38, s37, 10000
s_lshl_b32 s37, s37, 2
s_movk_i32 s39, -40
s_movk_i32 s40, 625
s_barrier
v_cmp_gt_u32 vcc, s40, v0
s_and_saveexec_b64 s[42:43], vcc
v_mov_b32 v3, 1""")
A(f"s_waitcnt vmcnt({2 if PREFETCH else 1})")
for i in range(4):
    A(f"v_mul_u32_u24 v{16+i}, 0xcccd, v{4+i}")
for i in range(4):
    A(f"v_lshrrev_b32 v{16+i}, 21, v{16+i}")
for i in range(4):
    A(f"v_lshlrev_b32 v{20+i}, 2, v{16+i}")
for i in range(4):
    A(f"ds_add_rtn_u32 v{24+i}, v{20+i}, v3")
for i in range(4):
    A(f"v_mad_i32_i24 v{16+i}, v{16+i}, s39, v{4+i}")
A(f"s_waitcnt vmcnt({1 if PREFETCH else 0})")
for i in range(4):
    A(f"v_lshl_or_b32 v{16+i}, v{16+i}, 16, v{8+i}")
A("""s_waitcnt lgkmcnt(0)
s_barrier
v_readfirstlane_b32 s41, v0
s_nop 3
s_cmp_ge_u32 s41, 64
s_cbranch_scc1 P_noscan
ds_read_b128 v[28:31], v1
s_waitcnt lgkmcnt(0)
v_add_u32 v33, v28, v29
v_add_u32 v34, v33, v30
v_add_u32 v35, v34, v31
v_mov_b32 v36, v35
s_nop 1
v_add_u32_dpp v36, v36, v36 row_shr:1 row_mask:0xf bank_mask:0xf bound_ctrl:0
s_nop 1
v_add_u32_dpp v36, v36, v36 row_shr:2 row_mask:0xf bank_mask:0xf bound_ctrl:0
s_nop 1
v_add_u32_dpp v36, v36, v36 row_shr:4 row_mask:0xf bank_mask:0xf bound_ctrl:0
s_nop 1
v_add_u32_dpp v36, v36, v36 row_shr:8 row_mask:0xf bank_mask:0xf bound_ctrl:0
s_nop 1
v_add_u32_dpp v36, v36, v36 row_bcast:15 row_mask:0xa bank_mask:0xf
s_nop 1
v_add_u32_dpp v36, v36, v36 row_bcast:31 row_mask:0xc bank_mask:0xf
v_sub_u32 v32, v36, v35
v_add_u32 v35, v34, v32
v_add_u32 v34, v33, v32
v_add_u32 v33, v28, v32
ds_write_b128 v1, v[32:35]
v_lshl_or_b32 v36, v28, 16, v32
v_lshl_or_b32 v37, v29, 16, v33
v_lshl_or_b32 v38, v30, 16, v34
v_lshl_or_b32 v39, v31, 16, v35
v_lshlrev_b32 v40, 12, v0
s_waitcnt lgkmcnt(0)
s_barrier
buffer_store_dword v36, v40, s[32:35], s37 offen
buffer_store_dword v37, v40, s[32:35], s37 offen offset:1024
buffer_store_dword v38, v40, s[32:35], s37 offen offset:2048
buffer_store_dword v39, v40, s[32:35], s37 offen offset:3072
s_branch P_scanned
P_noscan:
s_barrier
P_scanned:""")
for i in range(4):
    A(f"ds_read_b32 v{28+i}, v{20+i}")
for i in range(4):
    A(f"s_waitcnt lgkmcnt({3-i})")
    A(f"v_add_lshl_u32 v{28+i}, v{28+i}, v{24+i}, 2")
    A(f"ds_write_b32 v{28+i}, v{16+i} offset:1024")
    if i < 3:
        L[-3] = f"s_waitcnt lgkmcnt(3)"
A("""s_waitcnt lgkmcnt(0)
s_barrier
ds_read_b128 v[28:31], v1 offset:1024
s_waitcnt lgkmcnt(0)
buffer_store_dwordx4 v[28:31], v1, s[28:31], s38 offen
s_endpgm
P_frag:
s_movk_i32 s40, 512
v_cmp_gt_u32 vcc, s40, v0
s_and_saveexec_b64 s[42:43], vcc
s_cbranch_execz P_end
s_waitcnt lgkmcnt(0)
s_cmp_eq_u32 s2, 256
s_cselect_b32 s16, s10, s12
s_cselect_b32 s17, s11, s13
s_mov_b32 s18, 8192
s_mov_b32 s19, 0x20000
s_cselect_b32 s20, 10, 8
s_cselect_b32 s21, 0, 8192""")
A(f"s_add_u32 s24, s14, {WS_FRAGS}\ns_addc_u32 s25, s15, 0\ns_mov_b32 s26, 16384\ns_mov_b32 s27, 0x20000")
A("""v_and_b32 v1, 15, v0
v_lshlrev_b32 v1, 1, v1
v_lshrrev_b32 v2, 7, v0
v_lshl_add_u32 v1, v2, 5, v1
v_bfe_u32 v2, v0, 6, 1
v_lshl_add_u32 v1, v2, 12, v1
v_bfe_u32 v2, v0, 4, 2
v_lshlrev_b32 v2, s20, v2
v_add_u32 v1, v1, v2
v_lshlrev_b32 v2, 4, v0
s_cmp_eq_u32 s2, 256
s_cbranch_scc0 P_fragv""")
for j in range(8):
    A(f"buffer_load_ushort v{8+j}, v1, s[16:19], 0 offen offset:{j*128}")
A("s_branch P_fragst\nP_fragv:")
for j in range(8):
    A(f"buffer_load_ushort v{8+j}, v1, s[16:19], 0 offen offset:{(8*(j&3)+(j>>2))*128}")
A("""P_fragst:
s_waitcnt vmcnt(0)
v_lshl_or_b32 v4, v9, 16, v8
v_lshl_or_b32 v5, v11, 16, v10
v_lshl_or_b32 v6, v13, 16, v12
v_lshl_or_b32 v7, v15, 16, v14
buffer_store_dwordx4 v[4:7], v2, s[24:27], s21 offen
P_end:
s_endpgm""")

X = 32; QT_R = 64; ACC = 96
E = 8; P = 16
def Xj(j): return f"v[{X+4*j}:{X+4*j+3}]"
def Qj(j): return f"v[{QT_R+4*j}:{QT_R+4*j+3}]"
def ACCi(i): return f"v[{ACC+4*i}:{ACC+4*i+3}]"

A(""".globl agg_kernel
.p2align 8
.type agg_kernel,@function
agg_kernel:
s_cmp_ge_u32 s2, 256
s_cbranch_scc1 G_end
s_and_b32 s16, s2, 7
s_lshl_b32 s16, s16, 5
s_lshr_b32 s3, s2, 3
s_add_u32 s16, s16, s3
s_cmp_ge_u32 s16, 250
s_cbranch_scc1 G_end
s_load_dwordx2 s[4:5], s[0:1], 0
s_load_dwordx2 s[8:9], s[0:1], 56
s_load_dwordx2 s[12:13], s[0:1], 40
v_lshrrev_b32 v1, 6, v0
v_and_b32 v27, 63, v0
v_readfirstlane_b32 s17, v1
v_and_b32 v2, 0x3fc, v0""")
A(f"""s_lshl_b32 s3, s16, 10
s_add_u32 s3, s3, {WS_TABLE}
s_mov_b32 s6, 1280000
s_mov_b32 s7, 0x20000
s_mov_b32 s10, {WS_END}
s_mov_b32 s11, 0x20000
s_mov_b32 s14, 1280000
s_mov_b32 s15, 0x20000
s_mov_b32 s23, 0
s_waitcnt lgkmcnt(0)
buffer_load_dword v28, v2, s[8:11], s3 offen
v_lshlrev_b32 v3, 4, v27
s_cmp_ge_u32 s17, 12
s_cbranch_scc1 G_wvload
s_lshr_b32 s34, s17, 2
s_and_b32 s35, s17, 3
s_mul_i32 s36, s16, 40
s_lshl_b32 s37, s34, 4
s_add_u32 s36, s36, s37
s_lshl_b32 s36, s36, 7
v_and_b32 v4, 15, v27
v_lshlrev_b32 v4, 7, v4
v_and_b32 v5, 48, v27
v_add_u32 v4, v4, v5
buffer_load_dwordx4 v[32:35], v4, s[4:7], s36 offen
buffer_load_dwordx4 v[36:39], v4, s[4:7], s36 offen offset:64
s_lshl_b32 s37, s35, 11
s_add_u32 s37, s37, {WS_FRAGS}
buffer_load_dwordx4 v[40:43], v3, s[8:11], s37 offen
buffer_load_dwordx4 v[44:47], v3, s[8:11], s37 offen offset:1024
s_branch G_init
G_wvload:
s_lshl_b32 s37, s17, 11
s_add_u32 s37, s37, {WS_FRAGS + 8192 - 12*2048}
buffer_load_dwordx4 v[40:43], v3, s[8:11], s37 offen
buffer_load_dwordx4 v[44:47], v3, s[8:11], s37 offen offset:1024
buffer_load_dwordx4 v[32:35], v3, s[8:11], s37 offen
buffer_load_dwordx4 v[36:39], v3, s[8:11], s37 offen offset:1024
G_init:
v_lshlrev_b32 v5, 4, v0
v_mov_b32 v16, 0xffff
v_mov_b32 v17, 0xffff
v_mov_b32 v18, 0xffff
v_mov_b32 v19, 0xffff
v_mov_b32 v20, 0
v_mov_b32 v21, 0
v_mov_b32 v22, 0
v_mov_b32 v23, 0
ds_write_b128 v5, v[16:19] offset:{LISTS}
ds_write_b128 v5, v[20:23] offset:{PT}
v_lshlrev_b32 v6, 2, v27
s_cmp_lg_u32 s17, 0
s_cbranch_scc1 G_nocnt
ds_write_b32 v6, v20 offset:{CNT}
G_nocnt:
; constants
s_movk_i32 s24, 128
s_movk_i32 s25, 256
s_mov_b32 s26, 0x05040100
s_mov_b32 s27, 0x07060302
s_mov_b32 s28, {f32(-0.125*math.log2(math.e))}
s_movk_i32 s29, {CAP*4//8}
s_mov_b32 s30, 0xcccccccc
s_mov_b32 s31, 0xcccccccc
s_mov_b32 s32, 0xaaaaaaaa
s_mov_b32 s33, 0xaaaaaaaa
v_mov_b32 v26, 0
v_mov_b32 v25, 1""")
for i in range(32):
    A(f"v_mov_b32 v{ACC+i}, 0")
A(f"""; segment address: p'*10000 + (start + 4*t4)*4
v_lshrrev_b32 v6, 2, v0
v_mul_u32_u24 v6, 10000, v6
v_and_b32 v7, 3, v0
v_lshlrev_b32 v7, 2, v7
v_lshl_add_u32 v6, v7, 2, v6
s_waitcnt vmcnt(4)
v_and_b32 v29, 0xffff, v28
v_lshrrev_b32 v28, 16, v28
v_lshl_add_u32 v6, v29, 2, v6
buffer_load_dwordx4 v[8:11], v6, s[8:11], 0 offen
v_sub_u32 v29, v28, v7
v_cmp_lt_i32 vcc, 16, v29
v_mov_b32 v30, 0x40000000
v_add_u32 v6, 64, v6
v_cndmask_b32 v6, v30, v6, vcc
buffer_load_dwordx4 v[12:15], v6, s[8:11], 0 offen
s_mov_b64 s[40:41], vcc
v_cmp_lt_u32 vcc, 32, v28
s_waitcnt lgkmcnt(0)
s_barrier
s_cbranch_vccz G_noflag
ds_write_b32 v26, v25 offset:{CNT+64}
G_noflag:
s_waitcnt vmcnt(2)
s_cmp_ge_u32 s17, 12
s_cbranch_scc1 G_wvstore
v_mfma_f32_16x16x32_bf16 v[48:51], v[40:43], v[32:35], 0
v_mfma_f32_16x16x32_bf16 v[48:51], v[44:47], v[36:39], v[48:51]
s_lshl_b32 s36, s34, 12
s_lshl_b32 s37, s35, 5
s_add_u32 s36, s36, s37
v_and_b32 v4, 15, v27
v_lshlrev_b32 v4, 8, v4
v_lshrrev_b32 v5, 4, v27
v_lshl_add_u32 v4, v5, 3, v4
v_add_u32 v4, s36, v4
s_nop 3
v_cvt_pk_bf16_f32 v52, v48, v49
v_cvt_pk_bf16_f32 v53, v50, v51
ds_write2_b64 v4, v[52:53], v[52:53] offset0:{QT//8} offset1:{QT//8+16}
s_branch G_insert
G_wvstore:
s_lshl_b32 s36, s17, 11
s_add_u32 s36, s36, {WV - 12*2048}
v_add_u32 v4, s36, v3
ds_write_b128 v4, v[40:43]
ds_write_b128 v4, v[44:47] offset:1024
G_insert:
s_waitcnt vmcnt(0)""")

def insert4(ebase, rem_off, tag):
    for i in range(4):
        A(f"v_cmp_lt_i32 s[{44+2*i}:{45+2*i}], {rem_off+i}, v29")
    for i in range(4):
        A(f"v_and_b32_sdwa v{16+i}, 56, v{ebase+i} dst_sel:DWORD dst_unused:UNUSED_PAD src0_sel:DWORD src1_sel:WORD_1")
    for i in range(4):
        A(f"s_mov_b64 exec, s[{44+2*i}:{45+2*i}]")
        A(f"ds_add_rtn_u32 v{20+i}, v{16+i}, v25 offset:{CNT}")
    A("s_mov_b64 exec, -1")
    for i in range(4):
        A(f"v_mul_u32_u24 v{16+i}, s29, v{16+i}")
    for i in range(4):
        A(f"s_waitcnt lgkmcnt(3)")
        A(f"v_lshl_add_u32 v{16+i}, v{20+i}, 2, v{16+i}")
        A(f"s_mov_b64 exec, s[{44+2*i}:{45+2*i}]")
        A(f"ds_write_b32 v{16+i}, v{ebase+i} offset:{LISTS}")
        A("s_mov_b64 exec, -1")

insert4(8, 0, "a")
A("s_cmp_eq_u64 s[40:41], 0\ns_cbranch_scc1 G_inserted")
insert4(12, 16, "b")
A("G_inserted:")
A(f"""v_and_b32 v1, 7, v27
v_lshlrev_b32 v7, 1, v1
v_lshlrev_b32 v1, 4, v1
v_bfe_u32 v2, v27, 4, 1
v_lshl_add_u32 v2, v2, 7, v1
v_add_u32 v2, {QT}, v2
s_lshl_b32 s36, s17, 10
s_add_u32 s36, s36, {PT}
v_lshlrev_b32 v5, 4, v27
v_add_u32 v5, s36, v5
v_and_b32 v3, 0x380, v5
v_add3_u32 v3, v3, v7, s36
v_lshrrev_b32 v31, 3, v27
v_lshlrev_b32 v31, 5, v31
v_and_b32 v30, 7, v27
v_lshlrev_b32 v29, 3, v30
v_lshlrev_b32 v30, 2, v30
s_mul_i32 s18, s17, 11
s_lshr_b32 s18, s18, 5
s_mul_i32 s19, s18, 3
s_sub_u32 s19, s17, s19
s_waitcnt lgkmcnt(0)
s_barrier
G_round:
ds_read_b32 v28, v29 offset:{CNT}
ds_read_b32 v24, v26 offset:{CNT+64}
s_waitcnt lgkmcnt(0)
v_readlane_b32 s36, v28, 0
v_readlane_b32 s37, v28, 1
v_readlane_b32 s38, v28, 2
v_readlane_b32 s39, v28, 3
v_readlane_b32 s42, v28, 4
v_readfirstlane_b32 s43, v24
s_lshl_b32 s36, s36, 3
s_lshl_b32 s37, s37, 3
s_lshl_b32 s38, s38, 3
s_lshl_b32 s39, s39, 3
s_lshl_b32 s42, s42, 3
s_or_b32 s37, s37, 1
s_or_b32 s38, s38, 2
s_or_b32 s39, s39, 3
s_or_b32 s42, s42, 4
s_max_u32 s36, s36, s37
s_max_u32 s38, s38, s39
s_max_u32 s36, s36, s42
s_max_u32 s36, s36, s38
s_and_b32 s22, s36, 7
s_cmp_lg_u32 s23, 0
s_cbranch_scc1 G_slowsel
s_cmp_gt_u32 s36, {CAP*8+7}
s_cbranch_scc1 G_slow
s_cmp_lg_u32 s43, 0
s_cbranch_scc1 G_slow
s_branch G_sel
G_slowsel:
s_mov_b32 s22, 0
G_sel:
s_cmp_eq_u32 s17, 15
s_cselect_b32 s18, s22, s18
s_cselect_b32 s19, 3, s19
s_cmp_eq_u32 s18, s22
s_cselect_b32 s20, 4, 3
v_readlane_b32 s21, v28, s18
s_mul_i32 s36, s18, {CAP*4}
s_lshl_b32 s37, s19, 8
s_add_u32 s36, s36, s37
s_add_u32 s36, s36, {LISTS}
v_add_u32 v4, s36, v31
s_add_u32 s21, s21, 63
s_lshr_b32 s21, s21, 6
s_lshl_b32 s42, s20, 8
s_mov_b32 s43, s19
v_add_u32 v24, v4, v30
ds_read_b128 v[8:11], v4
ds_read_b128 v[12:15], v4 offset:16
ds_read_b32 v7, v24
s_waitcnt lgkmcnt(0)""")

def issue_x():
    for j in range(8):
        t = 24
        A(f"v_mad_u32_u16 v{24+(j&1)}, v{E+j}, s24, v1")
        A(f"buffer_load_dwordx4 {Xj(j)}, v{24+(j&1)}, s[4:7], 0 offen")
    for j in range(8):
        A(f"v_mad_u32_u16 v{E+j}, v{E+j}, s25, v2 op_sel:[1,0,0,0]")

issue_x()
A("G_loop:")
A("v_bfe_u32 v6, v7, 16, 3")
for j in range(8):
    A(f"ds_read_b128 {Qj(j)}, v{E+j}")
A("v_lshl_or_b32 v6, v6, 4, v3")
A("v_add_u32 v4, s42, v4")
A("v_add_u32 v24, v4, v30")
A("ds_read_b128 v[8:11], v4\nds_read_b128 v[12:15], v4 offset:16\nds_read_b32 v7, v24")
A("s_add_u32 s43, s43, s20")
for half in range(2):
    A(f"s_waitcnt vmcnt({4-4*half}) lgkmcnt({7-4*half})")
    for w in range(4):
        for j in range(4*half, 4*half+4):
            c = "0" if w == 0 else f"v{P+j}"
            A(f"v_dot2_f32_bf16 v{P+j}, v{X+4*j+w}, v{QT_R+4*j+w}, {c}")
for w in range(4):
    for jj in range(4):
        A(f"v_perm_b32 v{QT_R+8*w+jj}, v{X+4*(2*jj+1)+w}, v{X+4*(2*jj)+w}, s26")
        A(f"v_perm_b32 v{QT_R+8*w+4+jj}, v{X+4*(2*jj+1)+w}, v{X+4*(2*jj)+w}, s27")
A("s_waitcnt lgkmcnt(0)")
A("s_cmp_ge_u32 s43, s21\ns_cbranch_scc1 G_nonext")
issue_x()
A("G_nonext:")
for i in range(4):
    A(f"v_add_f32_dpp v{P+i}, v{P+i}, v{P+i} row_half_mirror row_mask:0xf bank_mask:0x5")
for i in range(4):
    A(f"v_add_f32_dpp v{P+i}, v{P+i+4}, v{P+i+4} row_half_mirror row_mask:0xf bank_mask:0xa")
A("s_nop 0")
for i in range(4):
    A(f"v_add_f32_dpp v{P+4+i}, v{P+i}, v{P+i} quad_perm:[2,3,0,1] row_mask:0xf bank_mask:0xf")
A(f"v_cndmask_b32 v{P}, v{P+4}, v{P+6}, s[30:31]")
A(f"v_cndmask_b32 v{P+1}, v{P+5}, v{P+7}, s[30:31]")
A("s_nop 0")
A(f"v_add_f32_dpp v{P+2}, v{P}, v{P} quad_perm:[1,0,3,2] row_mask:0xf bank_mask:0xf")
A(f"v_add_f32_dpp v{P+3}, v{P+1}, v{P+1} quad_perm:[1,0,3,2] row_mask:0xf bank_mask:0xf")
A(f"v_cndmask_b32 v{P+4}, v{P+2}, v{P+3}, s[32:33]")
A(f"v_mul_f32 v{P+4}, s28, v{P+4}")
A(f"v_exp_f32 v{P+4}, v{P+4}")
A("s_nop 0")
A(f"v_add_f32 v{P+4}, 1.0, v{P+4}")
A(f"v_rcp_f32 v{P+4}, v{P+4}")
A("s_nop 0")
A(f"v_cvt_pk_bf16_f32 v{P+4}, v{P+4}, v{P+4}")
A(f"ds_write_b16 v6, v{P+4}")
A(f"ds_read_b128 v[{P}:{P+3}], v5")
A("ds_write_b16 v6, v26")
A("s_waitcnt lgkmcnt(1)")
for i in range(8):
    A(f"v_mfma_f32_16x16x32_bf16 {ACCi(i)}, {Qj(i)}, v[{P}:{P+3}], {ACCi(i)}")
A("s_cmp_lt_u32 s43, s21\ns_cbranch_scc1 G_loop")
A("s_cmp_lg_u32 s23, 0\ns_cbranch_scc1 G_slownext")
A(f"""G_epi:
v_and_b32 v1, 7, v27
v_mul_u32_u24 v1, {SROW}, v1
v_bfe_u32 v2, v27, 4, 1
v_lshl_add_u32 v1, v2, 7, v1
v_lshrrev_b32 v2, 5, v27
v_mul_u32_u24 v2, {SSZ}, v2
s_mul_i32 s36, s17, {2*SSZ}
s_add_u32 s36, s36, {SLAB}
v_add3_u32 v1, v1, v2, s36
s_mov_b32 exec_lo, 0x00ff00ff
s_mov_b32 exec_hi, 0xff00ff00""")
for i in range(8):
    A(f"ds_write_b128 v1, {ACCi(i)} offset:{i*16}")
A(f"""s_mov_b64 exec, -1
v_bfe_u32 v1, v0, 4, 3
v_mul_u32_u24 v1, {SROW}, v1
v_and_b32 v2, 15, v0
v_lshl_add_u32 v1, v2, 4, v1
s_lshr_b32 s36, s17, 1
s_mul_i32 s37, s36, {6*SSZ}
s_add_u32 s37, s37, {SLAB}
v_add_u32 v3, s37, v1
v_add_u32 v1, {SLAB+30*SSZ}, v1
v_lshrrev_b32 v4, 4, v0
v_mul_u32_u24 v4, {AROW}, v4
v_lshl_add_u32 v4, v2, 3, v4
s_waitcnt lgkmcnt(0)
s_barrier
s_cmp_ge_u32 s17, 10
s_cbranch_scc1 G_reduced""")
for k in range(6):
    A(f"ds_read_b128 v[{32+4*k}:{35+4*k}], v3 offset:{k*SSZ}")
A("s_cmp_lg_u32 s36, s22\ns_cbranch_scc1 G_no15")
A(f"ds_read_b128 v[56:59], v1\nds_read_b128 v[60:63], v1 offset:{SSZ}")
A("s_waitcnt lgkmcnt(0)")
for r in range(4): A(f"v_add_f32 v{56+r}, v{56+r}, v{60+r}")
for r in range(4): A(f"v_add_f32 v{32+r}, v{32+r}, v{56+r}")
A("G_no15:\ns_waitcnt lgkmcnt(0)")
for r in range(4): A(f"v_add_f32 v{32+r}, v{32+r}, v{36+r}")
for r in range(4): A(f"v_add_f32 v{40+r}, v{40+r}, v{44+r}")
for r in range(4): A(f"v_add_f32 v{48+r}, v{48+r}, v{52+r}")
for r in range(4): A(f"v_add_f32 v{32+r}, v{32+r}, v{40+r}")
for r in range(4): A(f"v_add_f32 v{32+r}, v{32+r}, v{48+r}")
A(f"""v_cvt_pk_bf16_f32 v36, v32, v33
v_cvt_pk_bf16_f32 v37, v34, v35
v_lshlrev_b32 v40, 16, v36
v_and_b32 v41, 0xffff0000, v36
v_lshlrev_b32 v42, 16, v37
v_and_b32 v43, 0xffff0000, v37
v_sub_f32 v32, v32, v40
v_sub_f32 v33, v33, v41
v_sub_f32 v34, v34, v42
v_sub_f32 v35, v35, v43
v_cvt_pk_bf16_f32 v38, v32, v33
v_cvt_pk_bf16_f32 v39, v34, v35
v_add_u32 v4, {AGG}, v4
ds_write_b64 v4, v[36:37]
ds_write_b64 v4, v[38:39] offset:{ALO}
G_reduced:
s_lshr_b32 s34, s17, 2
s_and_b32 s35, s17, 3
v_and_b32 v1, 15, v27
s_lshl_b32 s36, s34, 4
v_add_u32 v1, s36, v1
v_mul_u32_u24 v2, {AROW}, v1
v_and_b32 v3, 48, v27
v_add_u32 v2, v2, v3
v_add_u32 v2, {AGG}, v2
s_lshl_b32 s37, s35, 11
s_add_u32 s37, s37, {WV}
v_lshlrev_b32 v4, 4, v27
v_add_u32 v4, s37, v4
s_waitcnt lgkmcnt(0)
s_barrier
s_cmp_ge_u32 s17, 12
s_cbranch_scc1 G_end
ds_read_b128 v[32:35], v4
ds_read_b128 v[40:43], v2
ds_read_b128 v[36:39], v4 offset:1024
ds_read_b128 v[44:47], v2 offset:64
ds_read_b128 v[48:51], v2 offset:{ALO}
ds_read_b128 v[52:55], v2 offset:{ALO+64}
v_cmp_gt_u32 vcc, 40, v1
v_lshlrev_b32 v1, 7, v1
v_lshrrev_b32 v3, 1, v3
v_add_u32 v1, v1, v3
s_mul_i32 s36, s16, 5120
s_lshl_b32 s37, s35, 5
s_add_u32 s36, s36, s37
s_waitcnt lgkmcnt(4)
v_mfma_f32_16x16x32_bf16 v[56:59], v[32:35], v[40:43], 0
s_waitcnt lgkmcnt(2)
v_mfma_f32_16x16x32_bf16 v[56:59], v[36:39], v[44:47], v[56:59]
s_waitcnt lgkmcnt(1)
v_mfma_f32_16x16x32_bf16 v[56:59], v[32:35], v[48:51], v[56:59]
s_waitcnt lgkmcnt(0)
v_mfma_f32_16x16x32_bf16 v[56:59], v[36:39], v[52:55], v[56:59]
s_and_saveexec_b64 s[40:41], vcc
s_nop 7
v_cvt_pk_bf16_f32 v60, v56, v57
v_cvt_pk_bf16_f32 v61, v58, v59
buffer_store_dwordx2 v[60:61], v1, s[12:15], s36 offen
G_end:
s_endpgm""")
A(f"""G_slow:
s_mov_b32 s23, 1
s_mov_b32 s52, 0
s_mov_b32 s53, 0
s_barrier
v_and_b32 v24, 0x3fc, v0
buffer_load_dword v28, v24, s[8:11], s3 offen
s_cmp_lg_u32 s17, 0
s_cbranch_scc1 G_slow0
ds_write_b32 v26, v26 offset:{CNT+68}
G_slow0:
s_waitcnt vmcnt(0) lgkmcnt(0)
s_barrier
v_lshrrev_b32 v28, 16, v28
ds_max_u32 v26, v28 offset:{CNT+68}
s_waitcnt lgkmcnt(0)
s_barrier
ds_read_b32 v28, v26 offset:{CNT+68}
s_waitcnt lgkmcnt(0)
v_readfirstlane_b32 s54, v28
s_branch G_slowround
G_slownext:
s_waitcnt vmcnt(0) lgkmcnt(0)
s_barrier
s_add_u32 s53, s53, 1
s_cmp_lt_u32 s53, 8
s_cbranch_scc1 G_slowround
s_mov_b32 s53, 0
s_add_u32 s52, s52, 16
s_cmp_ge_u32 s52, s54
s_cbranch_scc1 G_epi
G_slowround:
v_lshlrev_b32 v24, 4, v0
v_mov_b32 v16, 0xffff
v_mov_b32 v17, 0xffff
v_mov_b32 v18, 0xffff
v_mov_b32 v19, 0xffff
ds_write_b128 v24, v[16:19] offset:{LISTS}
s_cmp_lg_u32 s17, 0
s_cbranch_scc1 G_slow1
v_lshlrev_b32 v24, 2, v27
v_cmp_gt_u32 vcc, 16, v27
s_and_saveexec_b64 s[40:41], vcc
ds_write_b32 v24, v26 offset:{CNT}
s_mov_b64 exec, -1
G_slow1:
s_waitcnt lgkmcnt(0)
s_barrier
s_lshr_b32 s36, s17, 1
s_cmp_lg_u32 s36, s53
s_cbranch_scc1 G_slow2
v_and_b32 v24, 0x3fc, v0
buffer_load_dword v28, v24, s[8:11], s3 offen
v_lshrrev_b32 v6, 2, v0
v_mul_u32_u24 v6, 10000, v6
v_and_b32 v7, 3, v0
v_lshlrev_b32 v7, 2, v7
v_add_u32 v7, s52, v7
v_lshl_add_u32 v6, v7, 2, v6
s_waitcnt vmcnt(0)
v_and_b32 v29, 0xffff, v28
v_lshrrev_b32 v28, 16, v28
v_lshl_add_u32 v6, v29, 2, v6
buffer_load_dwordx4 v[8:11], v6, s[8:11], 0 offen
v_sub_u32 v29, v28, v7
v_mov_b32 v25, 1
s_waitcnt vmcnt(0)""")
insert4(8, 0, "s")
A(f"""v_and_b32 v29, 7, v27
v_lshlrev_b32 v29, 3, v29
G_slow2:
s_mul_i32 s18, s17, 11
s_lshr_b32 s18, s18, 5
s_mul_i32 s19, s18, 3
s_sub_u32 s19, s17, s19
s_waitcnt lgkmcnt(0)
s_barrier
s_branch G_round""")

def kd(name, nv, ns):
    A(f""".amdhsa_kernel {name}
  .amdhsa_next_free_vgpr {nv}
  .amdhsa_next_free_sgpr {ns}
  .amdhsa_accum_offset {(nv+3)//4*4}
  .amdhsa_group_segment_fixed_size 0
  .amdhsa_kernarg_size 64
  .amdhsa_user_sgpr_count 2
  .amdhsa_user_sgpr_kernarg_segment_ptr 1
  .amdhsa_system_sgpr_workgroup_id_x 1
.end_amdhsa_kernel""")
A('.section .rodata,"a"\n.p2align 6')
kd("part_kernel", 48, 48)
A(".p2align 6")
kd("agg_kernel", 128, 64)
open(OUT, "w").write("\n".join(L) + "\n")
```

```python
import struct
class Gen:
    def __init__(self, stamp=0, k1w=10, k2w=16):
        self.L = []; self.stamp = stamp; self.k1w = k1w; self.k2w = k2w
    def ST(self, i):
        if self.stamp: self.L.append(f"s_memtime s[{64+2*i}:{65+2*i}]")
    def STEND(self, base, nwaves, n=12):
        if not self.stamp: return
        A = self.A
        A("s_memrealtime s[96:97]")
        A("s_load_dwordx2 s[98:99], s[0:1], 56")
        A("s_mov_b64 exec, -1")
        A("v_lshrrev_b32 v1, 6, v0\ns_nop 1\nv_readfirstlane_b32 s100, v1")
        A(f"s_mul_i32 s101, s2, {nwaves}\ns_add_u32 s101, s101, s100\ns_lshl_b32 s101, s101, 6\ns_add_u32 s101, s101, {base}")
        A("s_waitcnt lgkmcnt(0)")
        A("s_add_u32 s98, s98, s101\ns_addc_u32 s99, s99, 0")
        A("v_mov_b32 v2, 0")
        for i in range(n):
            A(f"v_mov_b32 v1, s{64+2*i}\nglobal_store_dword v2, v1, s[98:99] offset:{4*i}")
        A("v_mov_b32 v1, s94\nglobal_store_dword v2, v1, s[98:99] offset:56")
        A("v_mov_b32 v1, s96\nglobal_store_dword v2, v1, s[98:99] offset:60")
    def A(self, s):
        for line in s.split("\n"):
            if line.startswith(";@ST"):
                t = line[4:].strip()
                if t == "0":
                    if self.stamp:
                        self.L.append("s_memrealtime s[94:95]")
                        for i in range(1, 12): self.L.append(f"s_mov_b32 s{64+2*i}, 0")
                    self.ST(0)
                elif t == "W":
                    if self.stamp: self.L.append("s_waitcnt vmcnt(0)")
                elif t == "E1": self.STEND(0x1000000, self.k1w)
                elif t == "E2": self.STEND(0x1100000, self.k2w)
                else: self.ST(int(t))
                continue
            self.L.append(line)
    def kd(self, name, nv, ns):
        if self.stamp: ns = 102
        self.A(f""".p2align 6
.amdhsa_kernel {name}
  .amdhsa_next_free_vgpr {nv}
  .amdhsa_next_free_sgpr {ns}
  .amdhsa_accum_offset {(nv+3)//4*4}
  .amdhsa_group_segment_fixed_size 0
  .amdhsa_kernarg_size 64
  .amdhsa_user_sgpr_count 2
  .amdhsa_user_sgpr_kernarg_segment_ptr 1
  .amdhsa_system_sgpr_workgroup_id_x 1
.end_amdhsa_kernel""")
    def write(self, path):
        open(path, "w").write("\n".join(self.L) + "\n")
def f32(x):
    return "0x%08x" % struct.unpack("<I", struct.pack("<f", x))[0]
HDR = """; Kernarg layout for this problem (64 bytes, ptrs only, base s[0:1]):
;   offset  56: d_ws      workspace"""
```

```python
import sys, math
from common import *
OUT = sys.argv[1]
opts = dict(stamp=0, pf=1, k1pf=0, touch=1, prio=2, epf=0)
for a in sys.argv[2:]:
    k, v = a.split("="); opts[k] = int(v)
G = Gen(opts["stamp"], 10, 16); A = G.A

WS_TABLE = 0x280000
WS_END = WS_TABLE + 256000
K1_LDS = 1024 + 2560 * 4
CAP = 320
QT = 0
WQ = 24576
XS = 32768
WV = XS + 6144
PT = WV + 8192
CNT = PT + 16 * 2048
LISTS = CNT + 256
AGG = LISTS + 16 * CAP * 4
K2_LDS = max(AGG + 48 * 128, LISTS + 15 * CAP * 4 + 1024 * 8 * 4)
assert AGG % 128 == 0
assert K2_LDS <= 163840 and PT % 256 == 0, K2_LDS
PAD = 0x7fffff30

A(HDR)
A(f"; @launch kernel=part_kernel grid=(256,1,1) block=(640,1,1) lds={K1_LDS}")
A(f"; @launch kernel=agg_kernel grid=(256,1,1) block=(1024,1,1) lds={K2_LDS}")
A('.amdgcn_target "amdgcn-amd-amdhsa--gfx950"\n.text')

def srd(d, lo, hi, n):
    A(f"s_mov_b32 s{d}, s{lo}\ns_mov_b32 s{d+1}, s{hi}\ns_mov_b32 s{d+2}, {n}\ns_mov_b32 s{d+3}, 0x20000")

K1PF = opts["k1pf"]; TOUCH = opts["touch"]
A(f""".globl part_kernel
.p2align 8
.type part_kernel,@function
part_kernel:
s_cmp_ge_u32 s2, 256
s_cbranch_scc1 P_end
s_load_dwordx4 s[4:7], s[0:1], 0
s_load_dwordx4 s[8:11], s[0:1], 16
s_load_dwordx2 s[12:13], s[0:1], 32
s_load_dwordx2 s[14:15], s[0:1], 56
;@ST0
v_lshlrev_b32 v1, 4, v0
v_lshlrev_b32 v2, 2, v0
v_mov_b32 v3, 0
s_mul_i32 s3, s2, 10000
s_mov_b32 s18, 2560000
s_mov_b32 s19, 0x20000
s_mov_b32 s22, 2560000
s_mov_b32 s23, 0x20000
v_readfirstlane_b32 s41, v0
ds_write_b32 v2, v3
s_waitcnt lgkmcnt(0)
s_mov_b32 s16, s8
s_mov_b32 s17, s9
s_mov_b32 s20, s6
s_mov_b32 s21, s7
buffer_load_dwordx4 v[4:7], v1, s[16:19], s3 offen nt
buffer_load_dwordx4 v[8:11], v1, s[20:23], s3 offen nt""")
srd(24, 4, 5, 1280000)
srd(28, 14, 15, 2560000)
A(f"s_add_u32 s32, s14, {WS_TABLE}\ns_addc_u32 s33, s15, 0\ns_mov_b32 s34, 256000\ns_mov_b32 s35, 0x20000")
A("""s_and_b32 s37, s2, 7
s_lshl_b32 s37, s37, 5
s_lshr_b32 s38, s2, 3
s_mul_i32 s36, s38, 40000
s_add_u32 s37, s37, s38
s_mul_i32 s38, s37, 10000
s_lshl_b32 s37, s37, 2
s_movk_i32 s39, -40
s_movk_i32 s40, 625
v_lshlrev_b32 v13, 6, v0
s_barrier
;@ST1
v_cmp_gt_u32 vcc, s40, v0
s_and_saveexec_b64 s[42:43], vcc
v_mov_b32 v3, 1
s_waitcnt vmcnt(1)
;@ST2""")
for i in range(4): A(f"v_mul_u32_u24 v{16+i}, 0xcccd, v{4+i}")
for i in range(4): A(f"v_lshrrev_b32 v{16+i}, 21, v{16+i}")
for i in range(4): A(f"v_lshlrev_b32 v{20+i}, 2, v{16+i}")
for i in range(4): A(f"ds_add_rtn_u32 v{24+i}, v{20+i}, v3")
for i in range(4): A(f"v_mad_i32_i24 v{16+i}, v{16+i}, s39, v{4+i}")
A("s_waitcnt vmcnt(0)")
if K1PF:
    A("buffer_load_dword v12, v13, s[24:27], s36 offen")
elif TOUCH:
    A("""s_cmp_lg_u32 s41, 64
s_cbranch_scc1 P_notouch
s_mul_i32 s36, s2, 5000
v_and_b32 v13, 63, v0
v_lshlrev_b32 v13, 7, v13
buffer_load_dword v12, v13, s[24:27], s36 offen
s_cmp_ge_u32 s2, 2
s_cbranch_scc1 P_notouch
s_cmp_eq_u32 s2, 0
s_cselect_b32 s44, s10, s12
s_cselect_b32 s45, s11, s13
s_mov_b32 s46, 8192
s_mov_b32 s47, 0x20000
buffer_load_dword v14, v13, s[44:47], 0 offen
P_notouch:""")
for i in range(4): A(f"v_lshl_or_b32 v{16+i}, v{8+i}, 7, v{16+i}")
A("""s_waitcnt lgkmcnt(0)
;@ST3
s_barrier
;@ST4
s_cmp_ge_u32 s41, 64
s_cbranch_scc1 P_noscan
ds_read_b128 v[28:31], v1
s_waitcnt lgkmcnt(0)
v_add_u32 v33, v28, v29
v_add_u32 v34, v33, v30
v_add_u32 v35, v34, v31
v_mov_b32 v36, v35
s_nop 1
v_add_u32_dpp v36, v36, v36 row_shr:1 row_mask:0xf bank_mask:0xf bound_ctrl:0
s_nop 1
v_add_u32_dpp v36, v36, v36 row_shr:2 row_mask:0xf bank_mask:0xf bound_ctrl:0
s_nop 1
v_add_u32_dpp v36, v36, v36 row_shr:4 row_mask:0xf bank_mask:0xf bound_ctrl:0
s_nop 1
v_add_u32_dpp v36, v36, v36 row_shr:8 row_mask:0xf bank_mask:0xf bound_ctrl:0
s_nop 1
v_add_u32_dpp v36, v36, v36 row_bcast:15 row_mask:0xa bank_mask:0xf
s_nop 1
v_add_u32_dpp v36, v36, v36 row_bcast:31 row_mask:0xc bank_mask:0xf
v_sub_u32 v32, v36, v35
v_add_u32 v35, v34, v32
v_add_u32 v34, v33, v32
v_add_u32 v33, v28, v32
ds_write_b128 v1, v[32:35]
v_lshl_or_b32 v36, v28, 16, v32
v_lshl_or_b32 v37, v29, 16, v33
v_lshl_or_b32 v38, v30, 16, v34
v_lshl_or_b32 v39, v31, 16, v35
v_lshlrev_b32 v40, 12, v0
s_waitcnt lgkmcnt(0)
s_barrier
buffer_store_dword v36, v40, s[32:35], s37 offen
buffer_store_dword v37, v40, s[32:35], s37 offen offset:1024
buffer_store_dword v38, v40, s[32:35], s37 offen offset:2048
buffer_store_dword v39, v40, s[32:35], s37 offen offset:3072
s_branch P_scanned
P_noscan:
s_barrier
P_scanned:
;@ST5""")
for i in range(4): A(f"ds_read_b32 v{28+i}, v{20+i}")
for i in range(4):
    A("s_waitcnt lgkmcnt(3)")
    A(f"v_add_lshl_u32 v{28+i}, v{28+i}, v{24+i}, 2")
    A(f"ds_write_b32 v{28+i}, v{16+i} offset:1024")
A(f"""s_waitcnt lgkmcnt(0)
;@ST6
s_barrier
;@ST7
ds_read_b128 v[28:31], v1 offset:1024
s_waitcnt lgkmcnt(0)
buffer_store_dwordx4 v[28:31], v1, s[28:31], s38 offen
;@ST8
;@STW
;@ST9
;@STE1
P_end:
s_endpgm""")

XC, QC, PW, PR, LB, OW, Z, PA = 0, 1, 2, 3, 4, 5, 6, 7
E, X, U, Q, ACC = 8, 16, 48, 80, 112
NV = 128
def r4(b): return f"v[{b}:{b+3}]"
A(f""".globl agg_kernel
.p2align 8
.type agg_kernel,@function
agg_kernel:
s_cmp_ge_u32 s2, 256
s_cbranch_scc1 G_end
s_and_b32 s43, s2, 7
s_lshl_b32 s16, s43, 5
s_lshr_b32 s44, s2, 3
s_add_u32 s16, s16, s44
s_cmp_ge_u32 s16, 250
s_cbranch_scc1 G_end
s_load_dwordx2 s[8:9], s[0:1], 56
s_load_dwordx2 s[4:5], s[0:1], 0
s_load_dwordx4 s[56:59], s[0:1], 24
s_load_dwordx2 s[12:13], s[0:1], 40
;@ST0
v_lshrrev_b32 v40, 6, v0
v_and_b32 v17, 63, v0
v_readfirstlane_b32 s17, v40
v_and_b32 v41, 0x3fc, v0
s_lshl_b32 s3, s16, 10
s_add_u32 s3, s3, {WS_TABLE}
s_mov_b32 s6, 1280000
s_mov_b32 s7, 0x20000
s_mov_b32 s10, {WS_END}
s_mov_b32 s11, 0x20000
s_mov_b32 s14, 1280000
s_mov_b32 s15, 0x20000
s_mov_b32 s23, 0
v_lshlrev_b32 v42, 4, v17
v_and_b32 v48, 7, v17
v_lshrrev_b32 v49, 4, v17
v_lshlrev_b32 v50, 1, v49
v_xor_b32 v50, v48, v50
v_and_b32 v51, 0x380, v42
v_lshl_add_u32 v50, v50, 4, v51
s_sub_u32 s34, s17, 2
s_min_u32 s34, s34, 6
s_cmp_eq_u32 s34, 6
s_cselect_b32 s34, 0, s34
s_lshl_b32 s34, s34, 10
s_mul_i32 s35, s16, 5120
s_add_u32 s35, s35, s34
s_add_u32 s34, s34, {XS}
s_and_b32 s45, s17, 7
s_lshl_b32 s45, s45, 10
s_add_u32 s36, s45, {WQ}
s_cmp_ge_u32 s17, 8
s_cselect_b32 m0, s36, s34
s_cselect_b32 s35, s45, s35
s_cselect_b32 s62, 8192, s6
s_cselect_b64 vcc, -1, 0
s_mov_b32 s63, 0x20000
v_cndmask_b32 v50, v50, v42, vcc
s_waitcnt lgkmcnt(0)
s_cselect_b32 s60, s56, s4
s_cselect_b32 s61, s57, s5
buffer_load_dword v43, v41, s[8:11], s3 offen""")
if opts["epf"]:
    A(f"""s_cmp_ge_u32 s17, 2
s_cbranch_scc1 G_dma
v_lshrrev_b32 v51, 4, v0
s_lshl_b32 s34, s44, 3
v_add_u32 v51, s34, v51
v_mul_u32_u24 v51, 10000, v51
v_and_b32 v52, 15, v0
v_lshl_add_u32 v51, v52, 7, v51
s_mul_i32 s34, s43, 1280
s_sub_i32 s34, s34, 384
s_max_i32 s34, s34, 0
buffer_load_dword v52, v51, s[8:11], s34 offen
s_branch G_dmad
G_dma:""")
A(f"""buffer_load_dwordx4 v50, s[60:63], s35 offen lds
G_dmad:
v_lshlrev_b32 v44, 4, v0
v_add_u32 v44, {LISTS}, v44
v_mov_b32 v68, {PAD}
v_mov_b32 v69, {PAD}
v_mov_b32 v70, {PAD}
v_mov_b32 v71, {PAD}
v_mov_b32 v72, 0
v_mov_b32 v73, 0
v_mov_b32 v74, 0
v_mov_b32 v75, 0
ds_write_b128 v44, v[68:71]
s_lshl_b32 s34, s17, 11
s_add_u32 s34, s34, {PT}
v_add_u32 v{PR}, s34, v42
ds_write_b128 v{PR}, v[72:75]
ds_write_b128 v{PR}, v[72:75] offset:1024
v_lshlrev_b32 v59, 2, v17
v_add_u32 v59, {CNT}, v59
s_cmp_ge_u32 s17, 4
s_cbranch_scc1 G_noz
ds_write_b128 v44, v[68:71] offset:16384
ds_write_b32 v59, v72
G_noz:
s_movk_i32 s24, 512
s_mov_b32 s28, {f32(-0.125*math.log2(math.e))}
s_movk_i32 s29, {CAP*4}
v_mov_b32 v{Z}, 0
v_mov_b32 v47, 1
v_lshrrev_b32 v44, 2, v0
v_mul_u32_u24 v44, 10000, v44
v_and_b32 v45, 3, v0
v_lshlrev_b32 v45, 2, v45
v_lshl_add_u32 v44, v45, 2, v44
v_mov_b32 v46, 0x40000000
s_waitcnt vmcnt(1)
;@ST1
v_and_b32 v56, 0xffff, v43
v_lshrrev_b32 v43, 16, v43
v_sub_u32 v57, v43, v45
v_lshl_add_u32 v44, v56, 2, v44
v_cmp_lt_i32 s[38:39], 0, v57
v_cmp_lt_i32 s[40:41], 16, v57
v_cmp_lt_u32 vcc, 32, v43
v_cndmask_b32 v56, v46, v44, s[38:39]
buffer_load_dwordx4 v[60:63], v56, s[8:11], 0 offen
s_cmp_eq_u64 s[40:41], 0
s_cbranch_scc1 G_noseg1
v_cndmask_b32 v56, v46, v44, s[40:41]
buffer_load_dwordx4 v[64:67], v56, s[8:11], 0 offen offset:64
s_waitcnt vmcnt(2) lgkmcnt(0)
s_branch G_b1
G_noseg1:
s_waitcnt vmcnt(1) lgkmcnt(0)
G_b1:
s_barrier
;@ST2
s_cbranch_vccz G_noflag
v_mov_b32 v56, 0xffff
v_mov_b32 v58, {CNT+64}
ds_write_b32 v58, v56
G_noflag:
s_cmp_lt_u32 s17, 8
s_cbranch_scc1 G_nowv
s_mov_b32 s60, s58
s_mov_b32 s61, s59
s_add_u32 m0, s45, {WV}
s_nop 0
buffer_load_dwordx4 v42, s[60:63], s45 offen lds
G_nowv:
s_lshr_b32 s36, s17, 2
s_and_b32 s37, s17, 3
v_and_b32 v51, 15, v17
s_cmp_ge_u32 s17, 12
s_cbranch_scc1 G_noq
v_lshrrev_b32 v52, 2, v51
v_lshl_add_u32 v52, v49, 3, v52
v_lshlrev_b32 v52, 7, v52
v_and_b32 v53, 3, v17
v_lshl_add_u32 v52, v53, 3, v52
s_lshl_b32 s35, s37, 5
v_add_u32 v52, s35, v52
ds_read_b64_tr_b16 v[76:77], v52 offset:{WQ}
ds_read_b64_tr_b16 v[78:79], v52 offset:{WQ+512}
ds_read_b64_tr_b16 v[80:81], v52 offset:{WQ+4096}
ds_read_b64_tr_b16 v[82:83], v52 offset:{WQ+4096+512}
v_and_b32 v53, 6, v51
v_xor_b32 v53, v49, v53
v_lshlrev_b32 v53, 4, v53
v_lshl_add_u32 v53, v51, 7, v53
s_lshl_b32 s35, s36, 11
v_add_u32 v53, s35, v53
v_xor_b32 v54, 64, v53
ds_read_b128 v[84:87], v53 offset:{XS}
ds_read_b128 v[88:91], v54 offset:{XS}
s_lshl_b32 s35, s37, 1
v_lshrrev_b32 v52, 1, v49
v_or_b32 v52, s35, v52
v_xor_b32 v52, s36, v52
v_xor_b32 v52, v51, v52
v_lshlrev_b32 v52, 4, v52
v_lshl_add_u32 v52, v51, 9, v52
v_and_b32 v53, 1, v49
v_lshl_add_u32 v52, v53, 3, v52
s_lshl_b32 s35, s36, 13
v_add_u32 v52, s35, v52
v_xor_b32 v53, 0x80, v52
s_waitcnt lgkmcnt(1)
v_mfma_f32_16x16x32_bf16 v[92:95], v[76:79], v[84:87], 0
s_waitcnt lgkmcnt(0)
v_mfma_f32_16x16x32_bf16 v[92:95], v[80:83], v[88:91], v[92:95]
G_noq:
v_lshlrev_b32 v54, 4, v48
v_or_b32 v{XC}, s17, v54
v_and_b32 v55, 1, v49
v_lshl_add_u32 v55, v55, 3, v48
v_xor_b32 v55, s17, v55
v_lshlrev_b32 v{QC}, 4, v55
v_and_b32 v50, 0x380, v42
v_lshrrev_b32 v55, 2, v48
v_lshl_add_u32 v50, v55, 10, v50
v_and_b32 v56, 3, v17
v_lshl_add_u32 v50, v56, 2, v50
v_add_u32 v{PW}, s34, v50
s_mul_i32 s34, s17, {CAP*4}
s_add_u32 s34, s34, {LISTS}
v_lshrrev_b32 v50, 3, v17
v_lshlrev_b32 v50, 2, v50
v_add_u32 v{LB}, s34, v50
v_lshl_add_u32 v{OW}, v48, 5, v{LB}
s_cmp_ge_u32 s17, 12
s_cbranch_scc1 G_noq2
v_cvt_pk_bf16_f32 v96, v92, v93
v_cvt_pk_bf16_f32 v97, v94, v95
ds_write_b64 v52, v[96:97] offset:{QT}
ds_write_b64 v53, v[96:97] offset:{QT}
G_noq2:""")
for i in range(16): A(f"v_mov_b32 v{ACC+i}, 0")
A(f"""v_mov_b32 v58, {CNT}
s_waitcnt vmcnt(0)
;@ST3""")
if opts["pf"]:
    A(f"""; waves 0..4 pull their share of x into this die's L2
s_cmp_ge_u32 s17, 5
s_cbranch_scc1 G_nopf
s_mul_i32 s34, s44, 40000
s_lshl_b32 s35, s17, 13
s_add_u32 s34, s34, s35
v_lshlrev_b32 v50, 7, v17
buffer_load_dword v18, v50, s[4:7], s34 offen
G_nopf:""")

def insert4(ebase, rem_off):
    for i in range(4):
        A(f"v_cmp_lt_i32 s[{46+2*i}:{47+2*i}], {rem_off+i}, v57")
    for i in range(4):
        A(f"v_and_b32 v{80+i}, 15, v{ebase+i}")
    for i in range(4):
        A(f"v_lshl_add_u32 v{84+i}, v{80+i}, 2, v58")
    for i in range(4):
        A(f"s_mov_b64 exec, s[{46+2*i}:{47+2*i}]")
        A(f"ds_add_rtn_u32 v{88+i}, v{84+i}, v47")
    A("s_mov_b64 exec, -1")
    for i in range(4):
        A(f"v_mad_u32_u24 v{80+i}, v{80+i}, s29, v58")
    for i in range(4):
        A("s_waitcnt lgkmcnt(3)")
        A(f"v_lshl_add_u32 v{80+i}, v{88+i}, 2, v{80+i}")
        A(f"s_mov_b64 exec, s[{46+2*i}:{47+2*i}]")
        A(f"ds_write_b32 v{80+i}, v{ebase+i} offset:{LISTS-CNT}")
        A("s_mov_b64 exec, -1")

insert4(60, 0)
A("s_cmp_eq_u64 s[40:41], 0\ns_cbranch_scc1 G_inserted")
insert4(64, 16)
def read_e():
    for k in range(4):
        A(f"ds_read2_b32 v[{E+2*k}:{E+2*k+1}], v{LB} offset0:{16*k} offset1:{16*k+8}")
A(f"""G_inserted:
s_movk_i32 s35, {CAP}
s_mov_b32 s30, 0xcccccccc
s_mov_b32 s31, 0xcccccccc
s_mov_b32 s32, 0xaaaaaaaa
s_mov_b32 s33, 0xaaaaaaaa
s_waitcnt lgkmcnt(0)
;@ST4
s_barrier
;@ST5
G_round:
ds_read_b32 v48, v59""")
read_e()
A(f"""ds_read_b32 v{PA}, v{OW}
s_waitcnt lgkmcnt(1)
v_cmp_lt_u32 vcc, s35, v48
v_readlane_b32 s21, v48, s17
s_cmp_lg_u32 s23, 0
s_cbranch_scc1 G_go
s_and_b32 s34, vcc_lo, 0x1ffff
s_cbranch_scc1 G_slow
G_go:
s_cmp_gt_i32 s21, 48
s_cbranch_scc1 G_full0
s_waitcnt vmcnt(0)""")
for i in range(32): A(f"v_mov_b32 v{X+i}, 0")
A("G_full0:")

def setprio(tag):
    if opts["prio"] != 2: return
    A(f"""s_cmp_gt_i32 s21, 128
s_cbranch_scc1 G_ph{tag}
s_setprio 1
s_cmp_gt_i32 s21, 64
s_cbranch_scc1 G_pd{tag}
s_setprio 0
s_branch G_pp{tag}
G_ph{tag}:
s_setprio 2
s_cmp_gt_i32 s21, 192
s_cbranch_scc0 G_pd{tag}
s_setprio 3
G_pd{tag}:""")

def issue_x(tag):
    def ld(j):
        A(f"v_xor_b32 v{X+4*j}, v{E+j}, v{XC}")
        A(f"buffer_load_dwordx4 {r4(X+4*j)}, v{X+4*j}, s[4:7], 0 offen")
    setprio(tag)
    for j in range(8): ld(j)
    A(f"s_branch G_xd{tag}\nG_pp{tag}:")
    for j in range(8):
        if j in (2, 4, 6):
            A(f"s_cmp_le_i32 s21, {8*j}\ns_cbranch_scc1 G_xd{tag}")
        ld(j)
    A(f"G_xd{tag}:")
    for j in range(8):
        A(f"v_mad_legacy_u16 v{E+j}, v{E+j}, s24, v{QC}")

issue_x("a")
A(""";@ST6
G_loop:""")
for j in range(8):
    A(f"ds_read_b128 {r4(Q+4*j)}, v{E+j} offset:{QT}")
A(f"""v_add_u32 v{LB}, 0x100, v{LB}
v_add_u32 v{OW}, 0x100, v{OW}""")
read_e()
A("""s_cmp_gt_i32 s21, 48
s_cbranch_scc1 G_full
s_waitcnt vmcnt(0)
G_full:
s_sub_i32 s21, s21, 64""")
for half in range(2):
    A(f"s_waitcnt vmcnt({4-4*half})")
    for w in range(4):
        for jp in range(2):
            j = 4*half + 2*jp
            d = U + 16*half + 4*w + 2*jp
            a = X + 4*j + (w & 2); b = X + 4*(j+1) + (w & 2)
            A(f"v_pk_mov_b32 v[{d}:{d+1}], v[{a}:{a+1}], v[{b}:{b+1}] op_sel:[{w&1},{w&1}]")
A("s_waitcnt lgkmcnt(0)")
A(f"v_and_or_b32 v{PA}, v{PA}, 48, v{PW}")
A("s_cmp_le_i32 s21, 0\ns_cbranch_scc1 G_nonext")
issue_x("b")
A("G_nonext:")
def Pj(j): return Q + 4*j
for half in range(2):
    for w in range(4):
        for jj in range(4):
            j = 4*half + jj
            c = "0" if w == 0 else f"v{Pj(j)}"
            A(f"v_dot2_f32_bf16 v{Pj(j)}, v{U+16*half+4*w+jj}, v{Q+4*j+w}, {c}")
for i in range(4):
    A(f"v_add_f32_dpp v{Pj(i)}, v{Pj(i)}, v{Pj(i)} row_half_mirror row_mask:0xf bank_mask:0x5")
for i in range(4):
    A(f"v_add_f32_dpp v{Pj(i)}, v{Pj(i+4)}, v{Pj(i+4)} row_half_mirror row_mask:0xf bank_mask:0xa")
A("s_nop 0")
for i in range(4):
    A(f"v_add_f32_dpp v{Pj(i)+1}, v{Pj(i)}, v{Pj(i)} quad_perm:[2,3,0,1] row_mask:0xf bank_mask:0xf")
A(f"""v_cndmask_b32 v{Pj(0)}, v{Pj(0)+1}, v{Pj(2)+1}, s[30:31]
v_cndmask_b32 v{Pj(1)}, v{Pj(1)+1}, v{Pj(3)+1}, s[30:31]
s_nop 0
v_add_f32_dpp v{Pj(2)}, v{Pj(0)}, v{Pj(0)} quad_perm:[1,0,3,2] row_mask:0xf bank_mask:0xf
v_add_f32_dpp v{Pj(3)}, v{Pj(1)}, v{Pj(1)} quad_perm:[1,0,3,2] row_mask:0xf bank_mask:0xf
v_cndmask_b32 v{Pj(4)}, v{Pj(2)}, v{Pj(3)}, s[32:33]
v_mul_f32 v{Pj(4)}, s28, v{Pj(4)}
v_exp_f32 v{Pj(4)}, v{Pj(4)}
s_nop 0
v_add_f32 v{Pj(4)}, 1.0, v{Pj(4)}
v_rcp_f32 v{Pj(4)}, v{Pj(4)}
s_nop 0
v_cvt_pk_bf16_f32 v{Pj(5)}, v{Pj(4)}, 0
v_cvt_pk_bf16_f32 v{Pj(4)}, 0, v{Pj(4)}
ds_write2_b32 v{PA}, v{Pj(5)}, v{Pj(4)} offset0:0 offset1:16
ds_read_b128 {r4(Q+24)}, v{PR}
ds_read_b128 {r4(Q+28)}, v{PR} offset:1024
ds_write2_b32 v{PA}, v{Z}, v{Z} offset0:0 offset1:16
ds_read_b32 v{PA}, v{OW}
s_waitcnt lgkmcnt(3)""")
for w in range(4):
    A(f"v_mfma_f32_16x16x32_bf16 {r4(ACC+4*w)}, {r4(U+4*w)}, {r4(Q+24)}, {r4(ACC+4*w)}")
A("s_waitcnt lgkmcnt(2)")
for w in range(4):
    A(f"v_mfma_f32_16x16x32_bf16 {r4(ACC+4*w)}, {r4(U+16+4*w)}, {r4(Q+28)}, {r4(ACC+4*w)}")
A(f"""s_cmp_gt_i32 s21, 0
s_cbranch_scc1 G_loop
s_cmp_lg_u32 s23, 0
s_cbranch_scc1 G_slownext
G_epi:
;@ST7
s_setprio 3
v_mbcnt_lo_u32_b32 v17, -1, 0
v_mbcnt_hi_u32_b32 v17, -1, v17
v_and_b32 v18, 3, v17
v_lshrrev_b32 v19, 4, v17
v_and_b32 v20, 2, v19
v_xor_b32 v20, v18, v20
v_and_b32 v21, 1, v19
v_lshl_add_u32 v20, v21, 2, v20
s_and_b32 s34, s17, 6
v_xor_b32 v20, s34, v20
v_lshlrev_b32 v20, 4, v20
v_lshl_add_u32 v20, v18, 11, v20
v_and_b32 v21, 4, v17
v_lshl_add_u32 v20, v21, 1, v20
s_lshl_b32 s34, s17, 7
s_add_u32 s34, s34, {AGG}
v_add_u32 v20, s34, v20
v_xor_b32 v21, 16, v20""")
for w in range(4):
    for r in range(2):
        A(f"v_permlane32_swap_b32 v{ACC+4*w+r}, v{ACC+4*w+r+2}")
for w in range(4):
    for r in range(2):
        A(f"v_add_f32_dpp v{ACC+4*w+r}, v{ACC+4*w+r+2}, v{ACC+4*w+r} row_ror:8 row_mask:0xf bank_mask:0xf")
A(f"""v_cvt_pk_bf16_f32 v24, v{ACC}, v{ACC+4}
v_cvt_pk_bf16_f32 v25, v{ACC+8}, v{ACC+12}
v_cvt_pk_bf16_f32 v26, v{ACC+1}, v{ACC+5}
v_cvt_pk_bf16_f32 v27, v{ACC+9}, v{ACC+13}
s_mov_b32 exec_lo, 0x00770077
s_mov_b32 exec_hi, 0x00770077
ds_write_b64 v20, v[24:25]
ds_write_b64 v21, v[26:27]
s_mov_b64 exec, -1
s_sub_u32 s36, s17, 8
s_cmp_ge_u32 s36, 6
s_cbranch_scc0 G_fw
s_waitcnt lgkmcnt(0)
;@ST8
s_barrier
;@ST9
s_branch G_fin
G_fw:
s_and_b32 s37, s36, 1
s_lshr_b32 s36, s36, 1
v_and_b32 v22, 15, v17
v_lshrrev_b32 v23, 2, v22
v_lshl_add_u32 v23, v19, 2, v23
v_lshlrev_b32 v23, 8, v23
v_lshl_add_u32 v23, v18, 4, v23
s_lshl_b32 s35, s37, 6
s_add_u32 s34, s35, {WV}
v_add_u32 v23, s34, v23""")
for f in range(2):
    for u in range(2):
        for hh in range(2):
            d = 32 + 8*f + 4*u + 2*hh
            A(f"ds_read_b64_tr_b16 v[{d}:{d+1}], v23 offset:{4096*u+128*hh+8*f}")
A(f"""v_and_b32 v28, 6, v22
v_xor_b32 v28, v19, v28
v_lshlrev_b32 v28, 4, v28
v_lshl_add_u32 v28, v22, 7, v28
s_lshl_b32 s34, s36, 11
s_add_u32 s34, s34, {AGG}
v_add_u32 v28, s34, v28
v_xor_b32 v29, 64, v28
s_lshl_b32 s34, s36, 4
v_add_u32 v22, s34, v22
v_cmp_gt_u32 vcc, 40, v22
v_lshlrev_b32 v22, 7, v22
v_lshl_add_u32 v22, v19, 4, v22
s_mul_i32 s34, s16, 5120
s_add_u32 s34, s34, s35
s_waitcnt lgkmcnt(0)
;@ST8
s_barrier
;@ST9
ds_read_b128 v[48:51], v28
ds_read_b128 v[52:55], v29
s_waitcnt lgkmcnt(1)
v_mfma_f32_16x16x32_bf16 v[56:59], v[32:35], v[48:51], 0
v_mfma_f32_16x16x32_bf16 v[60:63], v[40:43], v[48:51], 0
s_waitcnt lgkmcnt(0)
v_mfma_f32_16x16x32_bf16 v[56:59], v[36:39], v[52:55], v[56:59]
v_mfma_f32_16x16x32_bf16 v[60:63], v[44:47], v[52:55], v[60:63]
s_and_saveexec_b64 s[40:41], vcc
s_nop 6
v_cvt_pk_bf16_f32 v64, v56, v57
v_cvt_pk_bf16_f32 v65, v58, v59
v_cvt_pk_bf16_f32 v66, v60, v61
v_cvt_pk_bf16_f32 v67, v62, v63
buffer_store_dwordx4 v[64:67], v22, s[12:15], s34 offen
G_fin:
;@ST10
;@STW
;@ST11""")
if opts["stamp"]:
    A("v_mbcnt_lo_u32_b32 v0, -1, 0\nv_mbcnt_hi_u32_b32 v0, -1, v0\ns_lshl_b32 s34, s17, 6\ns_mov_b64 exec, -1\nv_mov_b32 v0, s34")
A(""";@STE2
G_end:
s_endpgm""")
def tid():
    A("""v_mbcnt_lo_u32_b32 v17, -1, 0
v_mbcnt_hi_u32_b32 v17, -1, v17
s_lshl_b32 s34, s17, 6
v_add_u32 v16, s34, v17""")
A(f"""G_slow:
s_mov_b32 s23, 1
s_mov_b32 s54, 0
s_mov_b32 s55, 0
s_waitcnt vmcnt(0) lgkmcnt(0)
s_barrier""")
tid()
A(f"""v_and_b32 v41, 0x3fc, v16
buffer_load_dword v43, v41, s[8:11], s3 offen
v_mov_b32 v58, {CNT+128}
s_cmp_lg_u32 s17, 0
s_cbranch_scc1 G_slow0
ds_write_b32 v58, v{Z}
G_slow0:
s_waitcnt vmcnt(0) lgkmcnt(0)
s_barrier
v_lshrrev_b32 v43, 16, v43
ds_max_u32 v58, v43
s_waitcnt lgkmcnt(0)
s_barrier
ds_read_b32 v43, v58
s_waitcnt lgkmcnt(0)
v_readfirstlane_b32 s42, v43
s_branch G_slowround
G_slownext:
s_waitcnt vmcnt(0) lgkmcnt(0)
s_barrier
s_add_u32 s55, s55, 1
s_cmp_lt_u32 s55, 16
s_cbranch_scc1 G_slowround
s_mov_b32 s55, 0
s_add_u32 s54, s54, 16
s_cmp_ge_u32 s54, s42
s_cbranch_scc1 G_epi
G_slowround:""")
tid()
A(f"""v_lshlrev_b32 v44, 4, v16
v_add_u32 v44, {LISTS}, v44
v_mov_b32 v68, {PAD}
v_mov_b32 v69, {PAD}
v_mov_b32 v70, {PAD}
v_mov_b32 v71, {PAD}
ds_write_b128 v44, v[68:71]
ds_write_b128 v44, v[68:71] offset:4096
v_and_b32 v59, 15, v17
v_lshlrev_b32 v59, 2, v59
v_add_u32 v59, {CNT}, v59
ds_write_b32 v59, v{Z}
s_waitcnt lgkmcnt(0)
s_barrier
s_cmp_lg_u32 s17, s55
s_cbranch_scc1 G_slow2
v_and_b32 v41, 0x3fc, v16
buffer_load_dword v43, v41, s[8:11], s3 offen
v_lshrrev_b32 v44, 2, v16
v_mul_u32_u24 v44, 10000, v44
v_and_b32 v45, 3, v16
v_lshlrev_b32 v45, 2, v45
v_add_u32 v45, s54, v45
v_lshl_add_u32 v44, v45, 2, v44
s_waitcnt vmcnt(0)
v_and_b32 v56, 0xffff, v43
v_lshrrev_b32 v43, 16, v43
v_lshl_add_u32 v44, v56, 2, v44
buffer_load_dwordx4 v[60:63], v44, s[8:11], 0 offen
v_sub_u32 v57, v43, v45
v_mov_b32 v47, 1
v_mov_b32 v58, {CNT}
s_waitcnt vmcnt(0)""")
insert4(60, 0)
A(f"""G_slow2:
s_mul_i32 s34, s17, {CAP*4}
s_add_u32 s34, s34, {LISTS}
v_lshrrev_b32 v50, 3, v17
v_lshlrev_b32 v50, 2, v50
v_add_u32 v{LB}, s34, v50
v_and_b32 v48, 7, v17
v_lshl_add_u32 v{OW}, v48, 5, v{LB}
s_waitcnt lgkmcnt(0)
s_barrier
s_branch G_round""")
A('.section .rodata,"a"')
G.kd("part_kernel", 48, 48)
G.kd("agg_kernel", NV, 64)
G.write(OUT)
```

```python
import sys, math
from common import *
OUT = sys.argv[1]
opts = dict(stamp=0, pf=1, k1pf=0, touch=1, prio=6, pb=0, m0=2, m1=2, m2=2, trace=0, epf=0)
for a in sys.argv[2:]:
    k, v = a.split("="); opts[k] = int(v)
G = Gen(opts["stamp"], 10, 16); A = G.A

WS_TABLE = 0x280000
WS_END = WS_TABLE + 256000
K1_LDS = 1024 + 2560 * 4
CAP = 320
QT = 0
WQ = 24576
XS = 32768
WV = XS + 6144
PT = WV + 8192
PTS = 2176
CNT = PT + 16 * PTS
LISTS = CNT + 256
AGG = LISTS + 16 * CAP * 4
K2_LDS = max(AGG + 48 * 128, LISTS + 15 * CAP * 4 + 1024 * 8 * 4)
assert AGG % 128 == 0
assert K2_LDS <= 163840 and PT % 256 == 0, K2_LDS
PAD = 0x7fffff30

A(HDR)
A(f"; @launch kernel=part_kernel grid=(256,1,1) block=(640,1,1) lds={K1_LDS}")
A(f"; @launch kernel=agg_kernel grid=(256,1,1) block=(1024,1,1) lds={K2_LDS}")
A('.amdgcn_target "amdgcn-amd-amdhsa--gfx950"\n.text')

def srd(d, lo, hi, n):
    A(f"s_mov_b32 s{d}, s{lo}\ns_mov_b32 s{d+1}, s{hi}\ns_mov_b32 s{d+2}, {n}\ns_mov_b32 s{d+3}, 0x20000")

K1PF = opts["k1pf"]; TOUCH = opts["touch"]
A(f""".globl part_kernel
.p2align 8
.type part_kernel,@function
part_kernel:
s_cmp_ge_u32 s2, 256
s_cbranch_scc1 P_end
s_load_dwordx4 s[4:7], s[0:1], 0
s_load_dwordx4 s[8:11], s[0:1], 16
s_load_dwordx2 s[12:13], s[0:1], 32
s_load_dwordx2 s[14:15], s[0:1], 56
;@ST0
v_lshlrev_b32 v1, 4, v0
v_lshlrev_b32 v2, 2, v0
v_mov_b32 v3, 0
s_mul_i32 s3, s2, 10000
s_mov_b32 s18, 2560000
s_mov_b32 s19, 0x20000
s_mov_b32 s22, 2560000
s_mov_b32 s23, 0x20000
v_readfirstlane_b32 s41, v0
ds_write_b32 v2, v3
s_waitcnt lgkmcnt(0)
s_mov_b32 s16, s8
s_mov_b32 s17, s9
s_mov_b32 s20, s6
s_mov_b32 s21, s7
buffer_load_dwordx4 v[4:7], v1, s[16:19], s3 offen nt
buffer_load_dwordx4 v[8:11], v1, s[20:23], s3 offen nt""")
srd(24, 4, 5, 1280000)
srd(28, 14, 15, 2560000)
A(f"s_add_u32 s32, s14, {WS_TABLE}\ns_addc_u32 s33, s15, 0\ns_mov_b32 s34, 256000\ns_mov_b32 s35, 0x20000")
A("""s_and_b32 s37, s2, 7
s_lshl_b32 s37, s37, 5
s_lshr_b32 s38, s2, 3
s_mul_i32 s36, s38, 40000
s_add_u32 s37, s37, s38
s_mul_i32 s38, s37, 10000
s_lshl_b32 s37, s37, 2
s_movk_i32 s39, -40
s_movk_i32 s40, 625
v_lshlrev_b32 v13, 6, v0
s_barrier
;@ST1
v_cmp_gt_u32 vcc, s40, v0
s_and_saveexec_b64 s[42:43], vcc
v_mov_b32 v3, 1
s_waitcnt vmcnt(1)
;@ST2""")
for i in range(4): A(f"v_mul_u32_u24 v{16+i}, 0xcccd, v{4+i}")
for i in range(4): A(f"v_lshrrev_b32 v{16+i}, 21, v{16+i}")
for i in range(4): A(f"v_lshlrev_b32 v{20+i}, 2, v{16+i}")
for i in range(4): A(f"ds_add_rtn_u32 v{24+i}, v{20+i}, v3")
for i in range(4): A(f"v_mad_i32_i24 v{16+i}, v{16+i}, s39, v{4+i}")
A("s_waitcnt vmcnt(0)")
if K1PF:
    A("buffer_load_dword v12, v13, s[24:27], s36 offen")
elif TOUCH:
    A("""s_cmp_lg_u32 s41, 64
s_cbranch_scc1 P_notouch
s_mul_i32 s36, s2, 5000
v_and_b32 v13, 63, v0
v_lshlrev_b32 v13, 7, v13
buffer_load_dword v12, v13, s[24:27], s36 offen
s_cmp_ge_u32 s2, 2
s_cbranch_scc1 P_notouch
s_cmp_eq_u32 s2, 0
s_cselect_b32 s44, s10, s12
s_cselect_b32 s45, s11, s13
s_mov_b32 s46, 8192
s_mov_b32 s47, 0x20000
buffer_load_dword v14, v13, s[44:47], 0 offen
P_notouch:""")
for i in range(4): A(f"v_lshl_or_b32 v{16+i}, v{8+i}, 7, v{16+i}")
A("""s_waitcnt lgkmcnt(0)
;@ST3
s_barrier
;@ST4
s_cmp_ge_u32 s41, 64
s_cbranch_scc1 P_noscan
ds_read_b128 v[28:31], v1
s_waitcnt lgkmcnt(0)
v_add_u32 v33, v28, v29
v_add_u32 v34, v33, v30
v_add_u32 v35, v34, v31
v_mov_b32 v36, v35
s_nop 1
v_add_u32_dpp v36, v36, v36 row_shr:1 row_mask:0xf bank_mask:0xf bound_ctrl:0
s_nop 1
v_add_u32_dpp v36, v36, v36 row_shr:2 row_mask:0xf bank_mask:0xf bound_ctrl:0
s_nop 1
v_add_u32_dpp v36, v36, v36 row_shr:4 row_mask:0xf bank_mask:0xf bound_ctrl:0
s_nop 1
v_add_u32_dpp v36, v36, v36 row_shr:8 row_mask:0xf bank_mask:0xf bound_ctrl:0
s_nop 1
v_add_u32_dpp v36, v36, v36 row_bcast:15 row_mask:0xa bank_mask:0xf
s_nop 1
v_add_u32_dpp v36, v36, v36 row_bcast:31 row_mask:0xc bank_mask:0xf
v_sub_u32 v32, v36, v35
v_add_u32 v35, v34, v32
v_add_u32 v34, v33, v32
v_add_u32 v33, v28, v32
ds_write_b128 v1, v[32:35]
v_lshl_or_b32 v36, v28, 16, v32
v_lshl_or_b32 v37, v29, 16, v33
v_lshl_or_b32 v38, v30, 16, v34
v_lshl_or_b32 v39, v31, 16, v35
v_lshlrev_b32 v40, 12, v0
s_waitcnt lgkmcnt(0)
s_barrier
buffer_store_dword v36, v40, s[32:35], s37 offen
buffer_store_dword v37, v40, s[32:35], s37 offen offset:1024
buffer_store_dword v38, v40, s[32:35], s37 offen offset:2048
buffer_store_dword v39, v40, s[32:35], s37 offen offset:3072
s_branch P_scanned
P_noscan:
s_barrier
P_scanned:
;@ST5""")
for i in range(4): A(f"ds_read_b32 v{28+i}, v{20+i}")
for i in range(4):
    A("s_waitcnt lgkmcnt(3)")
    A(f"v_add_lshl_u32 v{28+i}, v{28+i}, v{24+i}, 2")
    A(f"ds_write_b32 v{28+i}, v{16+i} offset:1024")
A(f"""s_waitcnt lgkmcnt(0)
;@ST6
s_barrier
;@ST7
ds_read_b128 v[28:31], v1 offset:1024
s_waitcnt lgkmcnt(0)
buffer_store_dwordx4 v[28:31], v1, s[28:31], s38 offen
;@ST8
;@STW
;@ST9
;@STE1
P_end:
s_endpgm""")

XC, QC, PW, PR, LB, OW, Z, PA = 0, 1, 2, 3, 4, 5, 6, 7
E, X, U, Q, ACC = 8, 16, 48, 80, 112
NV = 128
def r4(b): return f"v[{b}:{b+3}]"
A(f""".globl agg_kernel
.p2align 8
.type agg_kernel,@function
agg_kernel:
s_cmp_ge_u32 s2, 256
s_cbranch_scc1 G_end
s_and_b32 s43, s2, 7
s_lshl_b32 s16, s43, 5
s_lshr_b32 s44, s2, 3
s_add_u32 s16, s16, s44
s_cmp_ge_u32 s16, 250
s_cbranch_scc1 G_end
s_load_dwordx2 s[8:9], s[0:1], 56
s_load_dwordx2 s[4:5], s[0:1], 0
s_load_dwordx4 s[56:59], s[0:1], 24
s_load_dwordx2 s[12:13], s[0:1], 40
;@ST0
v_lshrrev_b32 v32, 6, v0
v_and_b32 v17, 63, v0
v_readfirstlane_b32 s17, v32
v_and_b32 v33, 0x3fc, v0
s_lshl_b32 s3, s16, 10
s_add_u32 s3, s3, {WS_TABLE}
s_mov_b32 s6, 1280000
s_mov_b32 s7, 0x20000
s_mov_b32 s10, {WS_END}
s_mov_b32 s11, 0x20000
s_mov_b32 s14, 1280000
s_mov_b32 s15, 0x20000
s_mov_b32 s23, 0
v_lshlrev_b32 v34, 4, v17
v_and_b32 v48, 7, v17
v_lshrrev_b32 v49, 4, v17
v_lshlrev_b32 v50, 1, v49
v_xor_b32 v50, v48, v50
v_and_b32 v51, 0x380, v34
v_lshl_add_u32 v50, v50, 4, v51
s_sub_u32 s34, s17, 2
s_min_u32 s34, s34, 6
s_cmp_eq_u32 s34, 6
s_cselect_b32 s34, 0, s34
s_lshl_b32 s34, s34, 10
s_mul_i32 s35, s16, 5120
s_add_u32 s35, s35, s34
s_add_u32 s34, s34, {XS}
s_and_b32 s45, s17, 7
s_lshl_b32 s45, s45, 10
s_add_u32 s36, s45, {WQ}
s_cmp_ge_u32 s17, 8
s_cselect_b32 m0, s36, s34
s_cselect_b32 s35, s45, s35
s_cselect_b32 s62, 8192, s6
s_cselect_b64 vcc, -1, 0
s_mov_b32 s63, 0x20000
v_cndmask_b32 v50, v50, v34, vcc
s_waitcnt lgkmcnt(0)
s_cselect_b32 s60, s56, s4
s_cselect_b32 s61, s57, s5
buffer_load_dword v35, v33, s[8:11], s3 offen""")
if opts["epf"]:
    A(f"""s_cmp_ge_u32 s17, 2
s_cbranch_scc1 G_dma
v_lshrrev_b32 v51, 4, v0
s_lshl_b32 s34, s44, 3
v_add_u32 v51, s34, v51
v_mul_u32_u24 v51, 10000, v51
v_and_b32 v52, 15, v0
v_lshl_add_u32 v51, v52, 7, v51
s_mul_i32 s34, s43, 1280
s_sub_i32 s34, s34, 384
s_max_i32 s34, s34, 0
buffer_load_dword v52, v51, s[8:11], s34 offen
s_branch G_dmad
G_dma:""")
A(f"""buffer_load_dwordx4 v50, s[60:63], s35 offen lds
G_dmad:
v_lshlrev_b32 v36, 4, v0
v_add_u32 v36, {LISTS}, v36
v_mov_b32 v68, {PAD}
v_mov_b32 v69, {PAD}
v_mov_b32 v70, {PAD}
v_mov_b32 v71, {PAD}
v_mov_b32 v72, 0
v_mov_b32 v73, 0
v_mov_b32 v74, 0
v_mov_b32 v75, 0
ds_write_b128 v36, v[68:71]
s_mul_i32 s34, s17, {PTS}
s_add_u32 s34, s34, {PT}
v_lshlrev_b32 v51, 1, v17
v_and_b32 v51, 48, v51
v_xor_b32 v{PR}, v51, v34
v_add_u32 v{PR}, s34, v{PR}
ds_write_b128 v{PR}, v[72:75]
ds_write_b128 v{PR}, v[72:75] offset:1088
v_lshlrev_b32 v59, 2, v17
v_add_u32 v59, {CNT}, v59
s_cmp_ge_u32 s17, 4
s_cbranch_scc1 G_noz
ds_write_b128 v36, v[68:71] offset:16384
ds_write_b32 v59, v72
G_noz:
s_movk_i32 s24, 512
s_mov_b32 s28, {f32(-0.125*math.log2(math.e))}
s_movk_i32 s29, {CAP*4}
v_mov_b32 v{Z}, 0
v_mov_b32 v39, 1
v_lshrrev_b32 v36, 2, v0
v_mul_u32_u24 v36, 10000, v36
v_and_b32 v37, 3, v0
v_lshlrev_b32 v37, 2, v37
v_lshl_add_u32 v36, v37, 2, v36
v_mov_b32 v38, 0x40000000
s_waitcnt vmcnt(1)
;@ST1
v_and_b32 v56, 0xffff, v35
v_lshrrev_b32 v35, 16, v35
v_sub_u32 v57, v35, v37
v_lshl_add_u32 v36, v56, 2, v36
v_cmp_lt_i32 s[38:39], 0, v57
v_cmp_lt_i32 s[40:41], 16, v57
v_cmp_lt_u32 vcc, 32, v35
v_cndmask_b32 v56, v38, v36, s[38:39]
buffer_load_dwordx4 v[60:63], v56, s[8:11], 0 offen
s_cmp_eq_u64 s[40:41], 0
s_cbranch_scc1 G_noseg1
v_cndmask_b32 v56, v38, v36, s[40:41]
buffer_load_dwordx4 v[64:67], v56, s[8:11], 0 offen offset:64
s_waitcnt vmcnt(2) lgkmcnt(0)
s_branch G_b1
G_noseg1:
s_waitcnt vmcnt(1) lgkmcnt(0)
G_b1:
s_barrier
;@ST2
s_cbranch_vccz G_noflag
v_mov_b32 v56, 0xffff
v_mov_b32 v58, {CNT+64}
ds_write_b32 v58, v56
G_noflag:
s_cmp_lt_u32 s17, 8
s_cbranch_scc1 G_nowv
s_mov_b32 s60, s58
s_mov_b32 s61, s59
s_add_u32 m0, s45, {WV}
s_nop 0
buffer_load_dwordx4 v34, s[60:63], s45 offen lds
G_nowv:
s_lshr_b32 s36, s17, 2
s_and_b32 s37, s17, 3
v_and_b32 v51, 15, v17
s_cmp_ge_u32 s17, 12
s_cbranch_scc1 G_noq
v_lshrrev_b32 v52, 2, v51
v_lshl_add_u32 v52, v49, 3, v52
v_lshlrev_b32 v52, 7, v52
v_and_b32 v53, 3, v17
v_lshl_add_u32 v52, v53, 3, v52
s_lshl_b32 s35, s37, 5
v_add_u32 v52, s35, v52
ds_read_b64_tr_b16 v[76:77], v52 offset:{WQ}
ds_read_b64_tr_b16 v[78:79], v52 offset:{WQ+512}
ds_read_b64_tr_b16 v[80:81], v52 offset:{WQ+4096}
ds_read_b64_tr_b16 v[82:83], v52 offset:{WQ+4096+512}
v_and_b32 v53, 6, v51
v_xor_b32 v53, v49, v53
v_lshlrev_b32 v53, 4, v53
v_lshl_add_u32 v53, v51, 7, v53
s_lshl_b32 s35, s36, 11
v_add_u32 v53, s35, v53
v_xor_b32 v54, 64, v53
ds_read_b128 v[84:87], v53 offset:{XS}
ds_read_b128 v[88:91], v54 offset:{XS}
s_lshl_b32 s35, s37, 1
v_lshrrev_b32 v52, 1, v49
v_or_b32 v52, s35, v52
v_xor_b32 v52, s36, v52
v_xor_b32 v52, v51, v52
v_lshlrev_b32 v52, 4, v52
v_lshl_add_u32 v52, v51, 9, v52
v_and_b32 v53, 1, v49
v_lshl_add_u32 v52, v53, 3, v52
s_lshl_b32 s35, s36, 13
v_add_u32 v52, s35, v52
v_xor_b32 v53, 0x80, v52
s_waitcnt lgkmcnt(1)
v_mfma_f32_16x16x32_bf16 v[92:95], v[76:79], v[84:87], 0
s_waitcnt lgkmcnt(0)
v_mfma_f32_16x16x32_bf16 v[92:95], v[80:83], v[88:91], v[92:95]
G_noq:
v_lshlrev_b32 v54, 4, v48
v_or_b32 v{XC}, s17, v54
v_and_b32 v55, 1, v49
v_lshl_add_u32 v55, v55, 3, v48
v_xor_b32 v55, s17, v55
v_lshlrev_b32 v{QC}, 4, v55
v_and_b32 v50, 0x380, v34
v_lshlrev_b32 v55, 1, v17
v_and_or_b32 v50, v55, 48, v50
v_lshrrev_b32 v55, 2, v48
v_mul_u32_u24 v55, 1088, v55
v_and_b32 v56, 3, v17
v_lshl_add_u32 v50, v56, 2, v50
v_add3_u32 v{PW}, v50, v55, s34
s_mul_i32 s34, s17, {CAP*4}
s_add_u32 s34, s34, {LISTS}
v_lshrrev_b32 v50, 3, v17
v_lshlrev_b32 v50, 2, v50
v_add_u32 v{LB}, s34, v50
v_lshl_add_u32 v{OW}, v48, 5, v{LB}
s_cmp_ge_u32 s17, 12
s_cbranch_scc1 G_noq2
v_cvt_pk_bf16_f32 v96, v92, v93
v_cvt_pk_bf16_f32 v97, v94, v95
ds_write_b64 v52, v[96:97] offset:{QT}
ds_write_b64 v53, v[96:97] offset:{QT}
G_noq2:""")
for i in range(16): A(f"v_mov_b32 v{ACC+i}, 0")
for i in list(range(8, 16)) + list(range(24, 32)): A(f"v_mov_b32 v{X+i}, 0")
A(f"""v_mov_b32 v58, {CNT}
s_waitcnt vmcnt(0)
;@ST3""")
if opts["pf"]:
    A(f"""; waves 0..4 pull their share of x into this die's L2
s_cmp_ge_u32 s17, 5
s_cbranch_scc1 G_nopf
s_mul_i32 s34, s44, 40000
s_lshl_b32 s35, s17, 13
s_add_u32 s34, s34, s35
v_lshlrev_b32 v50, 7, v17
buffer_load_dword v18, v50, s[4:7], s34 offen
G_nopf:""")

def insert4(ebase, rem_off):
    for i in range(4):
        A(f"v_cmp_lt_i32 s[{46+2*i}:{47+2*i}], {rem_off+i}, v57")
    for i in range(4):
        A(f"v_and_b32 v{80+i}, 15, v{ebase+i}")
    for i in range(4):
        A(f"v_lshl_add_u32 v{84+i}, v{80+i}, 2, v58")
    for i in range(4):
        A(f"s_mov_b64 exec, s[{46+2*i}:{47+2*i}]")
        A(f"ds_add_rtn_u32 v{88+i}, v{84+i}, v39")
    A("s_mov_b64 exec, -1")
    for i in range(4):
        A(f"v_mad_u32_u24 v{80+i}, v{80+i}, s29, v58")
    for i in range(4):
        A("s_waitcnt lgkmcnt(3)")
        A(f"v_lshl_add_u32 v{80+i}, v{88+i}, 2, v{80+i}")
        A(f"s_mov_b64 exec, s[{46+2*i}:{47+2*i}]")
        A(f"ds_write_b32 v{80+i}, v{ebase+i} offset:{LISTS-CNT}")
        A("s_mov_b64 exec, -1")

insert4(60, 0)
A("s_cmp_eq_u64 s[40:41], 0\ns_cbranch_scc1 G_inserted")
insert4(64, 16)
def read_e():
    for k in range(4):
        A(f"ds_read2_b32 v[{E+2*k}:{E+2*k+1}], v{LB} offset0:{16*k} offset1:{16*k+8}")
A(f"""G_inserted:
s_movk_i32 s35, {CAP}
s_mov_b32 s30, 0xcccccccc
s_mov_b32 s31, 0xcccccccc
s_mov_b32 s32, 0xaaaaaaaa
s_mov_b32 s33, 0xaaaaaaaa
s_waitcnt lgkmcnt(0)
;@ST4
s_barrier
;@ST5
G_round:
ds_read_b32 v48, v59
s_waitcnt lgkmcnt(0)
v_cmp_lt_u32 vcc, s35, v48
v_readlane_b32 s21, v48, s17
s_cmp_lg_u32 s23, 0
s_cbranch_scc1 G_go
s_and_b32 s34, vcc_lo, 0x1ffff
s_cbranch_scc1 G_slow
G_go:
s_add_u32 s20, s21, 63
s_lshr_b32 s21, s20, 6
s_max_u32 s21, s21, 1
s_sub_u32 s21, s21, 1
s_lshl_b32 s34, s21, 6
s_sub_i32 s20, s20, 63
s_sub_i32 s20, s20, s34
s_lshl_b32 s34, s21, 8
v_add_u32 v{LB}, s34, v{LB}
v_add_u32 v{OW}, s34, v{OW}""")
read_e()
A(f"""ds_read_b32 v{PA}, v{OW}
s_setprio 3
s_waitcnt lgkmcnt(1)""")
def xa(j): A(f"v_xor_b32 v{X+4*j}, v{E+j}, v{XC}")
def ld(j): A(f"buffer_load_dwordx4 {r4(X+4*j)}, v{X+4*j}, s[4:7], 0 offen")
def qa(n=8):
    for j in range(n):
        A(f"v_mad_legacy_u16 v{E+j}, v{E+j}, s24, v{QC}")
for j in range(8):
    if j in (2, 4, 6):
        A(f"s_cmp_le_i32 s20, {8*j}\ns_cbranch_scc1 G_xd0")
    xa(j); ld(j)
A("G_xd0:\ns_setprio 2")
qa()
def issue_x(tag):
    for j in range(8): xa(j)
    for j in range(8): ld(j)
    qa()
def Pj(j): return Q + 4*j
def movs(half):
    for w in range(4):
        for jp in range(2):
            j = 4*half + 2*jp
            d = U + 16*half + 4*w + 2*jp
            a = X + 4*j + (w & 2); b = X + 4*(j+1) + (w & 2)
            A(f"v_pk_mov_b32 v[{d}:{d+1}], v[{a}:{a+1}], v[{b}:{b+1}] op_sel:[{w&1},{w&1}]")
def dots(half):
    for w in range(4):
        for jj in range(4):
            j = 4*half + jj
            c = "0" if w == 0 else f"v{Pj(j)}"
            A(f"v_dot2_f32_bf16 v{Pj(j)}, v{U+16*half+4*w+jj}, v{Q+4*j+w}, {c}")
def tail(full):
    if not full: A("s_nop 1")
    for i in range(4):
        A(f"v_add_f32_dpp v{Pj(i)}, v{Pj(i)}, v{Pj(i)} row_half_mirror row_mask:0xf bank_mask:0x5")
    if full:
        for i in range(4):
            A(f"v_add_f32_dpp v{Pj(i)}, v{Pj(i+4)}, v{Pj(i+4)} row_half_mirror row_mask:0xf bank_mask:0xa")
    A(f"v_bitop3_b32 v{PA}, v{PA}, 48, v{PW} bitop3:0x6a")
    for i in range(4):
        A(f"v_add_f32_dpp v{Pj(i)+1}, v{Pj(i)}, v{Pj(i)} quad_perm:[2,3,0,1] row_mask:0xf bank_mask:0xf")
    A(f"""v_cndmask_b32 v{Pj(0)}, v{Pj(0)+1}, v{Pj(2)+1}, s[30:31]
v_cndmask_b32 v{Pj(1)}, v{Pj(1)+1}, v{Pj(3)+1}, s[30:31]
s_nop 0
v_add_f32_dpp v{Pj(2)}, v{Pj(0)}, v{Pj(0)} quad_perm:[1,0,3,2] row_mask:0xf bank_mask:0xf
v_add_f32_dpp v{Pj(3)}, v{Pj(1)}, v{Pj(1)} quad_perm:[1,0,3,2] row_mask:0xf bank_mask:0xf
v_cndmask_b32 v{Pj(4)}, v{Pj(2)}, v{Pj(3)}, s[32:33]
v_mul_f32 v{Pj(4)}, s28, v{Pj(4)}
v_exp_f32 v{Pj(4)}, v{Pj(4)}
s_nop 0
v_add_f32 v{Pj(4)}, 1.0, v{Pj(4)}
v_rcp_f32 v{Pj(4)}, v{Pj(4)}
s_nop 0
v_cvt_pk_bf16_f32 v{Pj(5)}, v{Pj(4)}, 0
v_cvt_pk_bf16_f32 v{Pj(4)}, 0, v{Pj(4)}
ds_write2_b32 v{PA}, v{Pj(5)}, v{Pj(4)} offset0:0 offset1:16
ds_read_b128 {r4(Q+24)}, v{PR}""")
    if full:
        A(f"""ds_read_b128 {r4(Q+28)}, v{PR} offset:1088
ds_write2_b32 v{PA}, v{Z}, v{Z} offset0:0 offset1:16
ds_read_b32 v{PA}, v{OW}
s_waitcnt lgkmcnt(3)""")
    else:
        A(f"""ds_write2_b32 v{PA}, v{Z}, v{Z} offset0:0 offset1:16
ds_read_b32 v{PA}, v{OW}
s_waitcnt lgkmcnt(2)""")
    for w in range(4):
        A(f"v_mfma_f32_16x16x32_bf16 {r4(ACC+4*w)}, {r4(U+4*w)}, {r4(Q+24)}, {r4(ACC+4*w)}")
    if full:
        A("s_waitcnt lgkmcnt(2)")
        for w in range(4):
            A(f"v_mfma_f32_16x16x32_bf16 {r4(ACC+4*w)}, {r4(U+16+4*w)}, {r4(Q+28)}, {r4(ACC+4*w)}")

def TR(i):
    if opts["trace"]: A(f"s_memtime s[{64+2*i}:{65+2*i}]")
def body(tag, mode, prio, full=True, first=False):
    tb = {"h": 1, "b": 1, "c": 4, "d": 7}[tag]
    for j in range(8 if full else 4):
        A(f"ds_read_b128 {r4(Q+4*j)}, v{E+j} offset:{QT}")
    A(f"""v_subrev_u32 v{LB}, 0x100, v{LB}
v_subrev_u32 v{OW}, 0x100, v{OW}""")
    read_e()
    if prio is not None: A(f"s_setprio {prio}")
    A("s_sub_i32 s21, s21, 1")
    for half in range(2 if full else 1):
        A(f"s_waitcnt vmcnt({0 if first else 4-4*half})")
        if half == (1 if full else 0): TR(tb)
        movs(half)
    A("s_waitcnt lgkmcnt(0)")
    def nxt():
        A(f"s_cmp_lt_i32 s21, 0\ns_cbranch_scc1 G_nonext{tag}")
        issue_x(tag)
        A(f"G_nonext{tag}:")
    if mode == 0: nxt()
    dots(0)
    if full: dots(1)
    if mode == 1: nxt()
    tail(full)
    TR(tb+1)
    if mode == 2: nxt()
    TR(tb+2)
A(";@ST6")
A("s_cmp_gt_i32 s20, 32\ns_cbranch_scc1 G_b0")
body("h", opts["m0"], None, full=False, first=True)
A("s_branch G_b1x\nG_b0:")
body("b", opts["m0"], None, first=True)
A("G_b1x:\ns_cmp_lt_i32 s21, 0\ns_cbranch_scc1 G_done")
body("c", opts["m1"], 1)
A("s_cmp_lt_i32 s21, 0\ns_cbranch_scc1 G_done")
A("G_loop:")
body("d", opts["m2"], 0)
A("s_cmp_ge_i32 s21, 0\ns_cbranch_scc1 G_loop")
A(f"""G_done:
s_cmp_lg_u32 s23, 0
s_cbranch_scc1 G_slownext
G_epi:
;@ST7
s_setprio 3
v_mbcnt_lo_u32_b32 v17, -1, 0
v_mbcnt_hi_u32_b32 v17, -1, v17
v_and_b32 v18, 3, v17
v_lshrrev_b32 v19, 4, v17
v_and_b32 v20, 2, v19
v_xor_b32 v20, v18, v20
v_and_b32 v21, 1, v19
v_lshl_add_u32 v20, v21, 2, v20
s_and_b32 s34, s17, 6
v_xor_b32 v20, s34, v20
v_lshlrev_b32 v20, 4, v20
v_lshl_add_u32 v20, v18, 11, v20
v_and_b32 v21, 4, v17
v_lshl_add_u32 v20, v21, 1, v20
s_lshl_b32 s34, s17, 7
s_add_u32 s34, s34, {AGG}
v_add_u32 v20, s34, v20
v_xor_b32 v21, 16, v20""")
for w in range(4):
    for r in range(2):
        A(f"v_permlane32_swap_b32 v{ACC+4*w+r}, v{ACC+4*w+r+2}")
for w in range(4):
    for r in range(2):
        A(f"v_add_f32_dpp v{ACC+4*w+r}, v{ACC+4*w+r+2}, v{ACC+4*w+r} row_ror:8 row_mask:0xf bank_mask:0xf")
A(f"""v_cvt_pk_bf16_f32 v24, v{ACC}, v{ACC+4}
v_cvt_pk_bf16_f32 v25, v{ACC+8}, v{ACC+12}
v_cvt_pk_bf16_f32 v26, v{ACC+1}, v{ACC+5}
v_cvt_pk_bf16_f32 v27, v{ACC+9}, v{ACC+13}
s_mov_b32 exec_lo, 0x00770077
s_mov_b32 exec_hi, 0x00770077
ds_write_b64 v20, v[24:25]
ds_write_b64 v21, v[26:27]
s_mov_b64 exec, -1
s_sub_u32 s36, s17, 8
s_cmp_ge_u32 s36, 6
s_cbranch_scc0 G_fw
s_waitcnt lgkmcnt(0)
;@ST8
s_barrier
;@ST9
s_branch G_fin
G_fw:
s_and_b32 s37, s36, 1
s_lshr_b32 s36, s36, 1
v_and_b32 v22, 15, v17
v_lshrrev_b32 v23, 2, v22
v_lshl_add_u32 v23, v19, 2, v23
v_lshlrev_b32 v23, 8, v23
v_lshl_add_u32 v23, v18, 4, v23
s_lshl_b32 s35, s37, 6
s_add_u32 s34, s35, {WV}
v_add_u32 v23, s34, v23""")
for f in range(2):
    for u in range(2):
        for hh in range(2):
            d = 32 + 8*f + 4*u + 2*hh
            A(f"ds_read_b64_tr_b16 v[{d}:{d+1}], v23 offset:{4096*u+128*hh+8*f}")
A(f"""v_and_b32 v28, 6, v22
v_xor_b32 v28, v19, v28
v_lshlrev_b32 v28, 4, v28
v_lshl_add_u32 v28, v22, 7, v28
s_lshl_b32 s34, s36, 11
s_add_u32 s34, s34, {AGG}
v_add_u32 v28, s34, v28
v_xor_b32 v29, 64, v28
s_lshl_b32 s34, s36, 4
v_add_u32 v22, s34, v22
v_cmp_gt_u32 vcc, 40, v22
v_lshlrev_b32 v22, 7, v22
v_lshl_add_u32 v22, v19, 4, v22
s_mul_i32 s34, s16, 5120
s_add_u32 s34, s34, s35
s_waitcnt lgkmcnt(0)
;@ST8
s_barrier
;@ST9
ds_read_b128 v[48:51], v28
ds_read_b128 v[52:55], v29
s_waitcnt lgkmcnt(1)
v_mfma_f32_16x16x32_bf16 v[56:59], v[32:35], v[48:51], 0
v_mfma_f32_16x16x32_bf16 v[60:63], v[40:43], v[48:51], 0
s_waitcnt lgkmcnt(0)
v_mfma_f32_16x16x32_bf16 v[56:59], v[36:39], v[52:55], v[56:59]
v_mfma_f32_16x16x32_bf16 v[60:63], v[44:47], v[52:55], v[60:63]
s_and_saveexec_b64 s[40:41], vcc
s_nop 6
v_cvt_pk_bf16_f32 v64, v56, v57
v_cvt_pk_bf16_f32 v65, v58, v59
v_cvt_pk_bf16_f32 v66, v60, v61
v_cvt_pk_bf16_f32 v67, v62, v63
buffer_store_dwordx4 v[64:67], v22, s[12:15], s34 offen
G_fin:
;@ST10
;@STW
;@ST11""")
if opts["stamp"]:
    A("v_mbcnt_lo_u32_b32 v0, -1, 0\nv_mbcnt_hi_u32_b32 v0, -1, v0\ns_lshl_b32 s34, s17, 6\ns_mov_b64 exec, -1\nv_mov_b32 v0, s34")
A(""";@STE2
G_end:
s_endpgm""")
def tid():
    A("""v_mbcnt_lo_u32_b32 v17, -1, 0
v_mbcnt_hi_u32_b32 v17, -1, v17
s_lshl_b32 s34, s17, 6
v_add_u32 v16, s34, v17""")
A(f"""G_slow:
s_mov_b32 s23, 1
s_mov_b32 s54, 0
s_mov_b32 s55, 0
s_waitcnt vmcnt(0) lgkmcnt(0)
s_barrier""")
tid()
A(f"""v_and_b32 v33, 0x3fc, v16
buffer_load_dword v35, v33, s[8:11], s3 offen
v_mov_b32 v58, {CNT+128}
s_cmp_lg_u32 s17, 0
s_cbranch_scc1 G_slow0
ds_write_b32 v58, v{Z}
G_slow0:
s_waitcnt vmcnt(0) lgkmcnt(0)
s_barrier
v_lshrrev_b32 v35, 16, v35
ds_max_u32 v58, v35
s_waitcnt lgkmcnt(0)
s_barrier
ds_read_b32 v35, v58
s_waitcnt lgkmcnt(0)
v_readfirstlane_b32 s42, v35
s_branch G_slowround
G_slownext:
s_waitcnt vmcnt(0) lgkmcnt(0)
s_barrier
s_add_u32 s55, s55, 1
s_cmp_lt_u32 s55, 16
s_cbranch_scc1 G_slowround
s_mov_b32 s55, 0
s_add_u32 s54, s54, 16
s_cmp_ge_u32 s54, s42
s_cbranch_scc1 G_epi
G_slowround:""")
tid()
A(f"""v_lshlrev_b32 v36, 4, v16
v_add_u32 v36, {LISTS}, v36
v_mov_b32 v68, {PAD}
v_mov_b32 v69, {PAD}
v_mov_b32 v70, {PAD}
v_mov_b32 v71, {PAD}
ds_write_b128 v36, v[68:71]
ds_write_b128 v36, v[68:71] offset:4096
v_and_b32 v59, 15, v17
v_lshlrev_b32 v59, 2, v59
v_add_u32 v59, {CNT}, v59
ds_write_b32 v59, v{Z}
s_waitcnt lgkmcnt(0)
s_barrier
s_cmp_lg_u32 s17, s55
s_cbranch_scc1 G_slow2
v_and_b32 v33, 0x3fc, v16
buffer_load_dword v35, v33, s[8:11], s3 offen
v_lshrrev_b32 v36, 2, v16
v_mul_u32_u24 v36, 10000, v36
v_and_b32 v37, 3, v16
v_lshlrev_b32 v37, 2, v37
v_add_u32 v37, s54, v37
v_lshl_add_u32 v36, v37, 2, v36
s_waitcnt vmcnt(0)
v_and_b32 v56, 0xffff, v35
v_lshrrev_b32 v35, 16, v35
v_lshl_add_u32 v36, v56, 2, v36
buffer_load_dwordx4 v[60:63], v36, s[8:11], 0 offen
v_sub_u32 v57, v35, v37
v_mov_b32 v39, 1
v_mov_b32 v58, {CNT}
s_waitcnt vmcnt(0)""")
insert4(60, 0)
A(f"""G_slow2:
s_mul_i32 s34, s17, {CAP*4}
s_add_u32 s34, s34, {LISTS}
v_lshrrev_b32 v50, 3, v17
v_lshlrev_b32 v50, 2, v50
v_add_u32 v{LB}, s34, v50
v_and_b32 v48, 7, v17
v_lshl_add_u32 v{OW}, v48, 5, v{LB}
s_waitcnt lgkmcnt(0)
s_barrier
s_branch G_round""")
A('.section .rodata,"a"')
G.kd("part_kernel", 48, 48)
G.kd("agg_kernel", NV, 64)
if opts["trace"]:
    k = G.L.index("agg_kernel:")
    seen = {}
    out = G.L[:k]
    go = G.L.index("G_round:"); done = G.L.index("G_done:")
    for i, l in enumerate(G.L[k:], k):
        if l.startswith("s_memtime") and not (go < i < done):
            if l == "s_memtime s[74:75]": l = "s_memtime s[64:65]"
            else: continue
        if l == "s_memtime s[76:77]" and i < G.L.index("G_b0:"): continue
        out.append(l)
    G.L = out
G.write(OUT)
```

```python
import sys, math
from common import *
OUT = sys.argv[1]
opts = dict(stamp=0, pf=0, m0=2, m1=2, m2=2, trace=0, slp=2, sc=1, early=0, pfs=33, dly=8, ep=0, lr=0)
for a in sys.argv[2:]:
    k, v = a.split("="); opts[k] = int(v)
G = Gen(opts["stamp"], 10, 16); A = G.A
NAME = "gather_scatter__kernel_systems_refs_featgraph__graph_kernel"

OVO = 16000
CH = 28416
WS_END = 250 * CH
CAP = 320
QT = 0
WQ = 24576
XS = 32768
WV = XS + 8192
PT = WV + 8192
PTS = 2176
CNT = PT + 16 * PTS
LISTS = CNT + 512
AGG = LISTS + 16 * CAP * 4
PCNT = AGG + 48 * 128
IMG = PCNT + 1024 + 256
OVF = IMG + 16384
RED = PCNT
K2_LDS = max(OVF + 12288, RED + 16 * 2432, LISTS + 15 * CAP * 4 + 1024 * 8 * 4)
assert AGG % 128 == 0 and K2_LDS <= 163840 and PT % 256 == 0, K2_LDS
PAD = 0xffff30
SC = " sc1" if opts["sc"] == 1 else " sc0 sc1"

A(HDR)
A(f"; @launch grid=(250,1,1) block=(1024,1,1) lds={K2_LDS}")
A('.amdgcn_target "amdgcn-amd-amdhsa--gfx950"\n.text')

PFS = [int(c) for c in "%04d" % opts["pfs"]]
def pfmask(pos): return sum(1 << (11 + i) for i in range(4) if PFS[i] == pos)
def xpf(pos):
    m = pfmask(pos)
    if not m: return
    A(f"""; some of the waves 11..14 pull their share of x into this die's L2
s_mov_b32 s34, {m}
s_bitcmp1_b32 s34, s17
s_cbranch_scc0 G_nopf{pos}
s_sub_u32 s35, s17, 11
s_mul_i32 s34, s44, 40000
s_lshl_b32 s35, s35, 13
s_add_u32 s34, s34, s35
v_lshlrev_b32 v50, 7, v17
buffer_load_dword v18, v50, s[4:7], s34 offen
G_nopf{pos}:""")
XC, QC, PW, PR, LB, OW, Z, PA = 0, 1, 2, 3, 4, 5, 6, 7
E, X, Q, PP, FR, ACC = 8, 16, 48, 80, 88, 112
U = Q
AG0, FA, FO, RW, RR = 104, 105, 106, 107, 108
NV = 128
def r4(b): return f"v[{b}:{b+3}]"
def gettag(lbl):
    A(f"""s_mov_b32 s35, 0x200000
{lbl}p:
s_waitcnt vmcnt(0)
v_readfirstlane_b32 s22, v78
s_cmp_lg_u32 s22, 0
s_cbranch_scc1 {lbl}d
global_load_dword v78, v{Z}, s[18:19]{SC}
s_sub_u32 s35, s35, 1
s_cmp_lg_u32 s35, 0
s_cbranch_scc1 {lbl}p
{lbl}d:
s_lshl_b32 s56, s22, 24
s_lshl_b32 s57, s22, 16
s_lshl_b32 s58, s22, 8
s_and_b32 s57, s57, 0xff000000
s_and_b32 s58, s58, 0xff000000
s_and_b32 s59, s22, 0xff000000""")

A(f""".globl {NAME}
.p2align 8
.type {NAME},@function
{NAME}:
s_cmp_ge_u32 s2, 250
s_cbranch_scc1 G_end
s_load_dwordx2 s[48:49], s[0:1], 16
s_load_dwordx2 s[52:53], s[0:1], 8
s_load_dwordx2 s[4:5], s[0:1], 0
s_load_dwordx4 s[56:59], s[0:1], 24
s_load_dwordx2 s[12:13], s[0:1], 40
s_load_dwordx2 s[18:19], s[0:1], 48
s_load_dwordx2 s[8:9], s[0:1], 56
;@ST0
v_lshrrev_b32 v32, 6, v0
v_and_b32 v17, 63, v0
v_readfirstlane_b32 s17, v32
v_lshlrev_b32 v33, 4, v0
v_lshlrev_b32 v34, 4, v17
s_mov_b32 s50, 2560000
s_mov_b32 s51, 0x20000
s_mov_b32 s54, 2560000
s_mov_b32 s55, 0x20000
s_mul_i32 s3, s2, 10240
s_and_b32 s43, s2, 7
s_lshr_b32 s44, s2, 3
s_mul_i32 s16, s43, 31
s_min_u32 s34, s43, 2
s_add_u32 s16, s16, s34
s_add_u32 s16, s16, s44
s_mov_b32 s6, 1280000
s_mov_b32 s7, 0x20000
s_mov_b32 s10, {WS_END}
s_mov_b32 s11, 0x20000
s_mov_b32 s14, 1280000
s_mov_b32 s15, 0x20000
s_mov_b32 s23, 0
v_and_b32 v48, 7, v17
v_lshrrev_b32 v49, 4, v17
v_mov_b32 v{Z}, 0
s_cmp_ge_u32 s17, 10
s_cbranch_scc1 G_helper
s_waitcnt lgkmcnt(0)
buffer_load_dwordx4 v[60:63], v33, s[48:51], s3 offen nt
buffer_load_dwordx4 v[64:67], v33, s[52:55], s3 offen nt
s_branch G_init
G_helper:
v_lshlrev_b32 v50, 1, v49
v_xor_b32 v50, v48, v50
v_and_b32 v51, 0x380, v34
v_lshl_add_u32 v50, v50, 4, v51
s_and_b32 s45, s17, 1
s_lshl_b32 s45, s45, 12
s_mov_b32 s63, 0x20000
s_waitcnt lgkmcnt(0)
s_cmp_lg_u32 s2, 0
s_cbranch_scc1 G_notagw
s_cmp_lg_u32 s17, 15
s_cbranch_scc1 G_notagw
s_memrealtime s[34:35]
s_waitcnt lgkmcnt(0)
s_or_b32 s34, s34, 1
v_mov_b32 v51, s34
s_mov_b64 exec, 1
global_store_dword v{Z}, v51, s[18:19]{SC}
s_mov_b64 exec, -1
G_notagw:
s_cmp_ge_u32 s17, 14
s_cselect_b32 s60, s58, s56
s_cselect_b32 s61, s59, s57
s_mov_b32 s34, {WQ}
s_cselect_b32 s34, {WV}, s34
s_mov_b32 s62, 8192
s_mov_b32 s35, s45
s_lshr_b32 s36, s17, 1
s_cmp_lg_u32 s36, 6
s_cbranch_scc1 G_hw
s_mov_b32 s60, s4
s_mov_b32 s61, s5
s_mov_b32 s62, 1280000
s_mov_b32 s34, {XS}
s_mul_i32 s35, s16, 5120
s_add_u32 s35, s35, s45
s_branch G_hd
G_hw:
v_mov_b32 v50, v34
G_hd:
s_add_u32 m0, s34, s45""")
for i in range(4):
    A(("s_nop 0\n" if i == 0 else "") + f"buffer_load_dwordx4 v50, s[60:63], s35 offen offset:{i*1024} lds")
xpf(0)
if opts["pf"]:
    A("""s_cmp_lg_u32 s17, 15
s_cbranch_scc1 G_init
s_mul_i32 s34, s44, 40000
s_add_u32 s34, s34, 32768
v_lshlrev_b32 v50, 7, v17
buffer_load_dword v18, v50, s[4:7], s34 offen""")
A(f"""G_init:
v_add_u32 v36, {IMG}, v33
v_mov_b32 v84, {PAD}
v_mov_b32 v85, {PAD}
v_mov_b32 v86, {PAD}
v_mov_b32 v87, {PAD}
v_lshlrev_b32 v59, 2, v0
v_add_u32 v59, {PCNT}, v59
ds_write_b128 v36, v[84:87]
s_cmp_ge_u32 s17, 12
s_cbranch_scc1 G_noz
ds_write_b128 v36, v[84:87] offset:16384
s_cmp_ge_u32 s17, 5
s_cbranch_scc1 G_noz
ds_write_b32 v59, v{Z}
G_noz:
s_movk_i32 s24, 512
s_mov_b32 s28, {f32(-0.125*math.log2(math.e))}
s_movk_i32 s29, {CAP*4}
s_movk_i32 s25, -40
s_mul_i32 s27, s2, {CH}
s_mov_b32 s43, {PAD}
v_mov_b32 v39, 1
v_mov_b32 v58, {PCNT}
v_mov_b32 v57, {IMG}
s_waitcnt lgkmcnt(0)
s_barrier
v_add_u32 v35, {LISTS}, v33
v_mov_b32 v88, 0
v_mov_b32 v89, 0
v_mov_b32 v90, 0
v_mov_b32 v91, 0
ds_write_b128 v35, v[84:87]
s_mul_i32 s26, s17, {PTS}
s_add_u32 s26, s26, {PT}
v_lshlrev_b32 v51, 1, v17
v_and_b32 v51, 48, v51
v_xor_b32 v{PR}, v51, v34
v_add_u32 v{PR}, s26, v{PR}
ds_write_b128 v{PR}, v[88:91]
ds_write_b128 v{PR}, v[88:91] offset:1088
s_cmp_lt_u32 s17, 10
s_cbranch_scc1 G_edges
s_cmp_ge_u32 s17, 14
s_cbranch_scc1 G_z2
ds_write_b128 v35, v[84:87] offset:6144
s_branch G_pb
G_z2:
v_lshlrev_b32 v50, 2, v17
v_add_u32 v50, {CNT}, v50
ds_write_b32 v50, v88
s_branch G_pb
G_edges:
s_waitcnt vmcnt(1)
;@ST1""")
for i in range(4): A(f"v_mul_u32_u24 v{76+i}, 0xcccd, v{60+i}")
for i in range(4): A(f"v_lshrrev_b32 v{76+i}, 21, v{76+i}")
for i in range(4): A(f"v_lshl_add_u32 v{68+i}, v{76+i}, 2, v58")
for i in range(4): A(f"ds_add_rtn_u32 v{72+i}, v{68+i}, v39")
for i in range(4): A(f"v_lshl_add_u32 v{80+i}, v{76+i}, 6, v57")
for i in range(4): A(f"v_mad_i32_i24 v{76+i}, v{76+i}, s25, v{60+i}")
for i in (1, 3): A(f"v_bfe_u32 v{60+i}, v{76+i}, 5, 1")
for i in (1, 3): A(f"v_lshl_add_u32 v{76+i}, v{60+i}, 3, v{76+i}")
A("s_waitcnt vmcnt(0)")
for i in range(4): A(f"v_lshl_or_b32 v{76+i}, v{64+i}, 7, v{76+i}")
A("s_waitcnt lgkmcnt(0)")
for i in range(4): A(f"v_cmp_lt_u32 s[{46+2*i}:{47+2*i}], 14, v{72+i}")
for i in range(4): A(f"v_lshl_add_u32 v{80+i}, v{72+i}, 2, v{80+i}")
for i in range(4):
    A(f"s_not_b64 exec, s[{46+2*i}:{47+2*i}]")
    A(f"ds_write_b32 v{80+i}, v{76+i}")
A(f"""s_mov_b64 exec, -1
s_or_b64 s[38:39], s[46:47], s[48:49]
s_or_b64 s[40:41], s[50:51], s[52:53]
s_or_b64 s[38:39], s[38:39], s[40:41]
G_pb:
s_waitcnt lgkmcnt(0)
s_barrier
;@ST2
global_load_dword v78, v{Z}, s[18:19]{SC}""".replace("global_load_dword v78", "global_load_dword v92"))
A(f"""s_cmp_ge_u32 s17, 4
s_cbranch_scc1 G_noalloc
ds_read_b32 v84, v59
v_add_u32 v86, {IMG+60}, v33
v_lshl_add_u32 v86, v33, 1, v86
v_add_u32 v86, v33, v86
s_waitcnt lgkmcnt(0)
v_cmp_lt_u32 vcc, 15, v84
v_subrev_u32 v84, 12, v84
v_lshrrev_b32 v84, 2, v84
s_and_saveexec_b64 s[40:41], vcc
ds_add_rtn_u32 v85, v58, v84 offset:1024
s_waitcnt lgkmcnt(0)
v_lshl_or_b32 v84, v84, 10, v85
ds_write_b32 v59, v85
ds_write_b32 v86, v84
s_mov_b64 exec, -1
s_waitcnt lgkmcnt(0)
G_noalloc:""")
xpf(1)
A(f"""s_barrier
s_cmp_ge_u32 s17, 10
s_cbranch_scc1 G_pd
s_cmp_eq_u64 s[38:39], 0
s_cbranch_scc1 G_pd
v_mov_b32 v57, {OVF-60}""")
for i in range(4): A(f"ds_read_b32 v{80+i}, v{68+i}")
for i in range(4): A(f"v_lshl_add_u32 v{72+i}, v{72+i}, 2, v57")
A("s_waitcnt lgkmcnt(0)")
for i in range(4): A(f"v_lshl_add_u32 v{80+i}, v{80+i}, 4, v{72+i}")
for i in range(4):
    A(f"s_mov_b64 exec, s[{46+2*i}:{47+2*i}]")
    A(f"ds_write_b32 v{80+i}, v{76+i}")
A(f"""s_mov_b64 exec, -1
s_waitcnt lgkmcnt(0)
G_pd:
s_barrier
;@ST3
v_mov_b32 v78, v92
s_cmp_ge_u32 s17, 10
s_cbranch_scc1 G_nost
ds_read_b128 v[84:87], v36
ds_read_b128 v[88:91], v36 offset:10240
ds_read_b32 v80, v58 offset:1024""".replace("v_mov_b32 v78, v92\n", ""))
G.L = [l.replace("global_load_dword v92,", "global_load_dword v98,") for l in G.L]
def gettag2(lbl):
    n = len(G.L); gettag(lbl)
    G.L[n:] = [l.replace("v78", "v98") for l in G.L[n:]]
gettag2("G_ta")
def tagor(b):
    for k in range(4): A(f"v_or_b32 v{b+k}, s{56+k}, v{b+k}")
A("s_waitcnt lgkmcnt(2)")
tagor(84)
A(f"buffer_store_dwordx4 v[84:87], v33, s[8:11], s27 offen{SC}")
A("s_waitcnt lgkmcnt(0)")
tagor(88)
A(f"""v_readfirstlane_b32 s34, v80
s_add_u32 s35, s27, 10240
s_movk_i32 s36, 360
v_cmp_gt_u32 vcc, s36, v0
s_cmp_ge_u32 s17, 6
s_cbranch_scc1 G_st2
s_and_saveexec_b64 s[40:41], vcc
buffer_store_dwordx4 v[88:91], v33, s[8:11], s35 offen{SC}
s_mov_b64 exec, -1
G_st2:
s_add_u32 s34, s34, 7
s_and_b32 s34, s34, -8
s_lshl_b32 s36, s17, 6
s_add_u32 s35, s27, {OVO}
v_mov_b32 v81, v0
v_add_u32 v82, {OVF-IMG}, v36
G_ovst:
s_cmp_ge_u32 s36, s34
s_cbranch_scc1 G_stdone
v_cmp_gt_u32 vcc, s34, v81
ds_read_b128 v[92:95], v82
s_waitcnt lgkmcnt(0)""")
tagor(92)
A(f"""s_and_saveexec_b64 s[40:41], vcc
buffer_store_dwordx4 v[92:95], v33, s[8:11], s35 offen{SC}
s_mov_b64 exec, -1
s_add_u32 s36, s36, 640
s_add_u32 s35, s35, 10240
v_add_u32 v81, 640, v81
v_add_u32 v82, 10240, v82
s_branch G_ovst
G_nost:""")
gettag2("G_tb")
A(f"""G_stdone:
;@ST4
s_barrier
;@ST5""")
xpf(2)
A(f"""; granule address: producer p = tid>>2, granule tid&3
v_lshrrev_b32 v36, 2, v0
v_mul_u32_u24 v36, {CH}, v36
v_and_b32 v37, 3, v0
v_lshl_add_u32 v33, v37, 4, v36
s_lshl_b32 s3, s16, 6
v_mov_b32 v38, 0x40000000
s_lshr_b32 s36, s17, 2
s_and_b32 s37, s17, 3
v_and_b32 v51, 15, v17
s_cmp_ge_u32 s17, 12
s_cbranch_scc1 G_noq
v_lshrrev_b32 v52, 2, v51
v_lshl_add_u32 v52, v49, 3, v52
v_lshlrev_b32 v52, 7, v52
v_and_b32 v53, 3, v17
v_lshl_add_u32 v52, v53, 3, v52
s_lshl_b32 s35, s37, 5
v_add_u32 v52, s35, v52
ds_read_b64_tr_b16 v[76:77], v52 offset:{WQ}
ds_read_b64_tr_b16 v[78:79], v52 offset:{WQ+512}
ds_read_b64_tr_b16 v[80:81], v52 offset:{WQ+4096}
ds_read_b64_tr_b16 v[82:83], v52 offset:{WQ+4096+512}
v_and_b32 v53, 6, v51
v_xor_b32 v53, v49, v53
v_lshlrev_b32 v53, 4, v53
s_cmp_eq_u32 s36, 2
s_cselect_b32 s35, 7, 15
v_and_b32 v54, s35, v51
v_lshl_add_u32 v53, v54, 7, v53
s_lshl_b32 s35, s36, 11
v_add_u32 v53, s35, v53
v_xor_b32 v54, 64, v53
ds_read_b128 v[68:71], v53 offset:{XS}
ds_read_b128 v[72:75], v54 offset:{XS}
s_lshl_b32 s35, s37, 1
v_lshrrev_b32 v52, 1, v49
v_or_b32 v52, s35, v52
v_xor_b32 v52, s36, v52
v_xor_b32 v52, v51, v52
v_lshlrev_b32 v52, 4, v52
v_lshl_add_u32 v52, v51, 9, v52
v_and_b32 v53, 1, v49
v_lshl_add_u32 v52, v53, 3, v52
s_lshl_b32 s35, s36, 13
v_add_u32 v52, s35, v52
v_xor_b32 v53, 0x80, v52
s_waitcnt lgkmcnt(1)
v_mfma_f32_16x16x32_bf16 v[100:103], v[76:79], v[68:71], 0
s_waitcnt lgkmcnt(0)
v_mfma_f32_16x16x32_bf16 v[100:103], v[80:83], v[72:75], v[100:103]
G_noq:
v_lshlrev_b32 v54, 4, v48
v_or_b32 v{XC}, s17, v54
v_and_b32 v55, 1, v49
v_lshl_add_u32 v55, v55, 3, v48
v_xor_b32 v55, s17, v55
v_lshlrev_b32 v{QC}, 4, v55
v_and_b32 v50, 0x380, v34
v_lshlrev_b32 v55, 1, v17
v_and_or_b32 v50, v55, 48, v50
v_lshrrev_b32 v55, 2, v48
v_mul_u32_u24 v55, 1088, v55
v_and_b32 v56, 3, v17
v_lshl_add_u32 v50, v56, 2, v50
v_add3_u32 v{PW}, v50, v55, s26
s_mul_i32 s34, s17, {CAP*4}
s_add_u32 s34, s34, {LISTS}
v_lshrrev_b32 v50, 3, v17
v_lshlrev_b32 v50, 2, v50
v_add_u32 v{LB}, s34, v50
v_lshl_add_u32 v{OW}, v48, 5, v{LB}
s_cmp_ge_u32 s17, 12
s_cbranch_scc1 G_noq2
v_cvt_pk_bf16_f32 v96, v100, v101
v_cvt_pk_bf16_f32 v97, v102, v103
ds_write_b64 v52, v[96:97] offset:{QT}
ds_write_b64 v53, v[96:97] offset:{QT}
G_noq2:
v_and_b32 v50, 2, v49
v_xor_b32 v50, v56, v50
v_and_b32 v55, 1, v49
v_lshl_add_u32 v50, v55, 2, v50
s_and_b32 s34, s17, 6
v_xor_b32 v50, s34, v50
v_lshlrev_b32 v50, 4, v50
v_lshl_add_u32 v50, v56, 11, v50
v_and_b32 v55, 4, v17
v_lshl_add_u32 v50, v55, 1, v50
s_lshl_b32 s34, s17, 7
s_add_u32 s34, s34, {AGG}
v_add_u32 v{AG0}, s34, v50
s_mul_i32 s34, s17, 2432
s_add_u32 s34, s34, {RED}
v_lshrrev_b32 v50, 3, v17
v_mul_u32_u24 v50, 144, v50
v_add3_u32 v{RW}, v50, v54, s34
v_lshrrev_b32 v55, 2, v48
v_mul_u32_u24 v55, 1216, v55
v_add3_u32 v50, v50, v55, s34
v_lshl_add_u32 v{RR}, v56, 2, v50
v_mov_b32 v{FA}, 0
v_mov_b32 v{FO}, 0
s_sub_u32 s36, s17, 8
s_cmp_ge_u32 s36, 6
s_cbranch_scc1 G_nofr
s_and_b32 s37, s36, 1
s_lshr_b32 s36, s36, 1
v_lshrrev_b32 v50, 2, v51
v_lshl_add_u32 v50, v49, 2, v50
v_lshlrev_b32 v50, 8, v50
v_lshl_add_u32 v50, v56, 4, v50
s_lshl_b32 s35, s37, 6
s_add_u32 s34, s35, {WV}
v_add_u32 v50, s34, v50""")
for f in range(2):
    for u in range(2):
        for hh in range(2):
            d = FR + 8*f + 4*u + 2*hh
            A(f"ds_read_b64_tr_b16 v[{d}:{d+1}], v50 offset:{4096*u+128*hh+8*f}")
A(f"""v_and_b32 v50, 6, v51
v_xor_b32 v50, v49, v50
v_lshlrev_b32 v50, 4, v50
v_lshl_add_u32 v50, v51, 7, v50
s_lshl_b32 s34, s36, 11
v_add_u32 v55, s34, v50
v_add_u32 v{FA}, {AGG}, v55
v_lshlrev_b32 v50, 7, v51
v_lshl_add_u32 v50, v49, 4, v50
s_add_u32 s34, s34, s35
v_add_u32 v{FO}, s34, v50
G_nofr:""")
for i in range(16): A(f"v_mov_b32 v{ACC+i}, 0")
for i in list(range(8, 16)) + list(range(24, 32)): A(f"v_mov_b32 v{X+i}, 0")
def untag(b, t):
    for k in range(4): A(f"v_xor_b32 v{b+k}, s{56+k}, v{b+k}")
    A(f"v_or3_b32 v{t}, v{b}, v{b+1}, v{b+2}\nv_or_b32 v{t}, v{t}, v{b+3}\nv_cmp_le_u32 vcc, s42, v{t}\ns_nop 1")
def lanemask():
    A("""s_mov_b64 s[40:41], -1
s_cmp_lg_u32 s17, 15
s_cselect_b32 s41, -1, 0xff
s_mov_b32 s42, 0x1000000""")
def control():
    A(f"""s_nop 0
v_mov_b32_dpp v56, v63 quad_perm:[3,3,3,3] row_mask:0xf bank_mask:0xf
v_cmp_ne_u32 vcc, s43, v56
v_lshrrev_b32 v57, 10, v56
v_and_b32 v56, 0x3ff, v56
s_and_b64 vcc, vcc, s[40:41]
v_lshl_add_u32 v56, v56, 4, v33
v_cndmask_b32 v57, 0, v57, vcc""")
A(f"""v_mov_b32 v58, {CNT}
v_lshl_add_u32 v59, v17, 2, v58
{'s_waitcnt lgkmcnt(0)'+chr(10)+'s_barrier' if opts['early'] else ''}
;@ST6
s_setprio 3""")
lanemask()
A(f"""s_mov_b32 s34, 0x200000
s_sleep {opts["dly"]}
G_poll:
buffer_load_dwordx4 v[60:63], v33, s[8:11], s3 offen{SC}
s_waitcnt vmcnt(0)""")
untag(60, 56)
A(f"""s_and_b64 vcc, vcc, s[40:41]
s_cbranch_scc0 G_polld
s_mov_b64 exec, vcc
s_sleep {opts["slp"]}
s_sub_u32 s34, s34, 1
s_cmp_lg_u32 s34, 0
s_cbranch_scc1 G_poll
G_polld:
s_mov_b64 exec, -1
;@ST7""")
control()
A(f"""v_cmp_lt_u32 s[38:39], v37, v57
v_cmp_lt_u32 vcc, 4, v57
s_mov_b32 s36, {OVO}
v_cndmask_b32 v56, v38, v56, s[38:39]
s_cbranch_vccz G_noflag
v_mov_b32 v64, 0xffff
ds_write_b32 v58, v64 offset:64
G_noflag:
s_cmp_eq_u64 s[38:39], 0
s_cbranch_scc1 G_noov
buffer_load_dwordx4 v[64:67], v56, s[8:11], s36 offen{SC}
G_noov:""")

def insert4(ebase, lanes, main):
    for i in range(4):
        A(f"v_cmp_ne_u32 s[{46+2*i}:{47+2*i}], s43, v{ebase+i}")
    for i in range(4):
        A(f"v_and_b32 v{80+i}, 15, v{ebase+i}")
    for i in range(4):
        A(f"v_lshl_add_u32 v{84+i}, v{80+i}, 2, v58")
    if main:
        A("s_and_b32 s52, s52, 0x77777777\ns_and_b32 s53, s53, 0x77777777")
    for i in range(4):
        A(f"s_and_b64 s[{46+2*i}:{47+2*i}], s[{46+2*i}:{47+2*i}], {lanes}")
        A(f"s_mov_b64 exec, s[{46+2*i}:{47+2*i}]")
        A(f"ds_add_rtn_u32 v{68+i}, v{84+i}, v39")
    A("s_mov_b64 exec, -1")
    for i in range(4):
        A(f"v_mad_u32_u24 v{80+i}, v{80+i}, s29, v58")
    for i in range(4):
        A("s_waitcnt lgkmcnt(3)")
        A(f"v_lshl_add_u32 v{80+i}, v{68+i}, 2, v{80+i}")
        A(f"s_mov_b64 exec, s[{46+2*i}:{47+2*i}]")
        A(f"ds_write_b32 v{80+i}, v{ebase+i} offset:{LISTS-CNT}")
        A("s_mov_b64 exec, -1")

insert4(60, "s[40:41]", True)
A(";@ST8")
A(f"""s_cmp_eq_u64 s[38:39], 0
s_cbranch_scc1 G_ins2
s_mov_b32 s34, 0x200000
G_poll2:
s_waitcnt vmcnt(0)""")
untag(64, 57)
A(f"""s_and_b64 vcc, vcc, s[38:39]
s_cbranch_scc0 G_poll2d
buffer_load_dwordx4 v[64:67], v56, s[8:11], s36 offen{SC}
s_sub_u32 s34, s34, 1
s_cmp_lg_u32 s34, 0
s_cbranch_scc1 G_poll2
G_poll2d:""")
insert4(64, "s[38:39]", False)
A("G_ins2:")
xpf(3)

def read_e():
    for k in range(4):
        A(f"ds_read2_b32 v[{E+2*k}:{E+2*k+1}], v{LB} offset0:{16*k} offset1:{16*k+8}")
def xa(j): A(f"v_xor_b32 v{X+4*j}, v{E+j}, v{XC}")
def ld(j): A(f"buffer_load_dwordx4 {r4(X+4*j)}, v{X+4*j}, s[4:7], 0 offen")
def qa(n=8):
    for j in range(n):
        A(f"v_mad_legacy_u16 v{E+j}, v{E+j}, s24, v{QC}")
def issue_x(tag):
    for j in range(8): xa(j)
    for j in range(8): ld(j)
    qa()
def issue_part(tag):
    for j in range(8):
        if j in (2, 4, 6):
            A(f"s_cmp_le_i32 s20, {8*j}\ns_cbranch_scc1 G_xd{tag}")
        xa(j); ld(j)
    A(f"G_xd{tag}:")
    qa()
A(f"""G_inserted:
s_movk_i32 s35, {CAP}
s_mov_b32 s30, 0xcccccccc
s_mov_b32 s31, 0xcccccccc
s_mov_b32 s32, 0xaaaaaaaa
s_mov_b32 s33, 0xaaaaaaaa
s_mov_b32 s27, 0""")
A(f"""v_add_u32 v{LB}, 0x200, v{LB}
v_add_u32 v{OW}, 0x200, v{OW}
s_waitcnt lgkmcnt(0)
s_barrier""")
A(f""";@ST9
G_round:
ds_read_b32 v48, v59""")
read_e()
A(f"""ds_read_b32 v{PA}, v{OW}
s_waitcnt lgkmcnt(5)
v_cmp_lt_u32 vcc, s35, v48
v_readlane_b32 s21, v48, s17
s_cmp_lg_u32 s23, 0
s_cbranch_scc1 G_go
s_and_b32 s34, vcc_lo, 0x1ffff
s_cbranch_scc1 G_slow
G_go:
s_add_u32 s20, s21, 63
s_lshr_b32 s21, s20, 6
s_max_u32 s21, s21, 1
s_sub_u32 s21, s21, 1
s_lshl_b32 s34, s21, 6
s_sub_i32 s20, s20, 63
s_sub_i32 s20, s20, s34
s_cmp_eq_u32 s21, 2
s_cbranch_scc1 G_hit
s_lshl_b32 s34, s21, 8
s_sub_u32 s34, s34, 0x200
v_add_u32 v{LB}, s34, v{LB}
v_add_u32 v{OW}, s34, v{OW}""")
read_e()
A(f"""ds_read_b32 v{PA}, v{OW}
G_hit:
s_setprio 3
s_waitcnt lgkmcnt(1)""")
issue_part("0")
A("s_setprio 2")
def Pj(j): return PP + j
def movs(half):
    for w in range(4):
        for jp in range(2):
            j = 4*half + 2*jp
            d = U + 16*half + 4*w + 2*jp
            a = X + 4*j + (w & 2); b = X + 4*(j+1) + (w & 2)
            A(f"v_pk_mov_b32 v[{d}:{d+1}], v[{a}:{a+1}], v[{b}:{b+1}] op_sel:[{w&1},{w&1}]")
def dots(half):
    for w in range(4):
        for jj in range(4):
            j = 4*half + jj
            c = "0" if w == 0 else f"v{Pj(j)}"
            A(f"v_dot2_f32_bf16 v{Pj(j)}, v{X+4*j+w}, v{Q+4*j+w}, {c}")
def tail(full):
    T = X
    if opts["lr"]:
        A(f"s_waitcnt lgkmcnt(0)\nv_bitop3_b32 v{PA}, v{PA}, 48, v{PW} bitop3:0x6a")
        A(f"""v_add_f32 v{Pj(0)}, v{Pj(0)}, v{Pj(1)}
v_add_f32 v{Pj(2)}, v{Pj(2)}, v{Pj(3)}
v_add_f32 v{Pj(4)}, v{Pj(4)}, v{Pj(5)}
v_add_f32 v{Pj(6)}, v{Pj(6)}, v{Pj(7)}
v_add_f32 v{Pj(0)}, v{Pj(0)}, v{Pj(2)}
v_add_f32 v{Pj(4)}, v{Pj(4)}, v{Pj(6)}
v_add_f32 v{Pj(4)}, v{Pj(0)}, v{Pj(4)}""")
    for i in range(0 if opts["lr"] else 4):
        A(f"v_add_f32_dpp v{Pj(i)}, v{Pj(i)}, v{Pj(i)} row_half_mirror row_mask:0xf bank_mask:0x5")
    if full and not opts["lr"]:
        for i in range(4):
            A(f"v_add_f32_dpp v{Pj(i)}, v{Pj(i+4)}, v{Pj(i+4)} row_half_mirror row_mask:0xf bank_mask:0xa")
    if not opts["lr"]:
        A(f"v_bitop3_b32 v{PA}, v{PA}, 48, v{PW} bitop3:0x6a")
        for i in range(4):
            A(f"v_add_f32_dpp v{Pj(4+i)}, v{Pj(i)}, v{Pj(i)} quad_perm:[2,3,0,1] row_mask:0xf bank_mask:0xf")
        A(f"""v_cndmask_b32 v{Pj(0)}, v{Pj(4)}, v{Pj(6)}, s[30:31]
v_cndmask_b32 v{Pj(1)}, v{Pj(5)}, v{Pj(7)}, s[30:31]
s_nop 0
v_add_f32_dpp v{Pj(2)}, v{Pj(0)}, v{Pj(0)} quad_perm:[1,0,3,2] row_mask:0xf bank_mask:0xf
v_add_f32_dpp v{Pj(3)}, v{Pj(1)}, v{Pj(1)} quad_perm:[1,0,3,2] row_mask:0xf bank_mask:0xf
v_cndmask_b32 v{Pj(4)}, v{Pj(2)}, v{Pj(3)}, s[32:33]""")
    A(f"""v_mul_f32 v{Pj(4)}, s28, v{Pj(4)}
v_exp_f32 v{Pj(4)}, v{Pj(4)}
s_nop 0
v_add_f32 v{Pj(4)}, 1.0, v{Pj(4)}
v_rcp_f32 v{Pj(4)}, v{Pj(4)}
s_nop 0
v_cvt_pk_bf16_f32 v{Pj(5)}, v{Pj(4)}, 0
v_cvt_pk_bf16_f32 v{Pj(4)}, 0, v{Pj(4)}
ds_write2_b32 v{PA}, v{Pj(5)}, v{Pj(4)} offset0:0 offset1:16
ds_read_b128 {r4(T)}, v{PR}""")
    if full:
        A(f"""ds_read_b128 {r4(T+4)}, v{PR} offset:1088
ds_write2_b32 v{PA}, v{Z}, v{Z} offset0:0 offset1:16
ds_read_b32 v{PA}, v{OW}
s_waitcnt lgkmcnt(3)""")
    else:
        A(f"""ds_write2_b32 v{PA}, v{Z}, v{Z} offset0:0 offset1:16
ds_read_b32 v{PA}, v{OW}
s_waitcnt lgkmcnt(2)""")
    for w in range(4):
        A(f"v_mfma_f32_16x16x32_bf16 {r4(ACC+4*w)}, {r4(U+4*w)}, {r4(T)}, {r4(ACC+4*w)}")
    if full:
        A("s_waitcnt lgkmcnt(2)")
        for w in range(4):
            A(f"v_mfma_f32_16x16x32_bf16 {r4(ACC+4*w)}, {r4(U+16+4*w)}, {r4(T+4)}, {r4(ACC+4*w)}")

def TR(i):
    if opts["trace"] and i < 12: A(f"s_memtime s[{64+2*i}:{65+2*i}]")
def body(tag, mode, prio, full=True, first=False):
    tb = {"h": 1, "b": 1, "c": 4, "d": 7}[tag]
    for j in range(8 if full else 4):
        A(f"ds_read_b128 {r4(Q+4*j)}, v{E+j} offset:{QT}")
    A(f"""v_subrev_u32 v{LB}, 0x100, v{LB}
v_subrev_u32 v{OW}, 0x100, v{OW}""")
    read_e()
    if prio is not None: A(f"s_setprio {prio}")
    A("s_sub_i32 s21, s21, 1")
    for half in range(2 if full else 1):
        A(f"s_waitcnt vmcnt({0 if first else 4-4*half}) lgkmcnt({(8 if full else 4) - 4*half})")
        if half == (1 if full else 0): TR(tb)
        dots(half)
    if opts["lr"]:
        n = len(G.L)
        for half in range(2 if full else 1): movs(half)
        mv = G.L[n:]; del G.L[n:]
        G.L.extend(mv[:3])
        A(f"ds_write_b128 v{RW}, {r4(PP)}")
        if full: A(f"ds_write_b128 v{RW}, {r4(PP+4)} offset:1216")
        for k in range(4):
            A(f"ds_read2_b32 v[{PP+2*k}:{PP+2*k+1}], v{RR} offset0:{8*k} offset1:{8*k+4}")
        G.L.extend(mv[3:])
    else:
        for half in range(2 if full else 1): movs(half)
    tail(full)
    TR(tb+1)
    A(f"s_cmp_lt_i32 s21, 0\ns_cbranch_scc1 G_nonext{tag}")
    issue_x(tag)
    A(f"G_nonext{tag}:")
    TR(tb+2)
A("G_disp:")
A("s_cmp_gt_i32 s20, 32\ns_cbranch_scc1 G_b0")
body("h", opts["m0"], None, full=False, first=True)
A("s_branch G_b1x\nG_b0:")
body("b", opts["m0"], None, first=True)
A("G_b1x:\ns_cmp_lt_i32 s21, 0\ns_cbranch_scc1 G_done")
body("c", opts["m1"], 1)
A("s_cmp_lt_i32 s21, 0\ns_cbranch_scc1 G_done")
A("G_loop:")
body("d", opts["m2"], 0)
A("s_cmp_ge_i32 s21, 0\ns_cbranch_scc1 G_loop")
A(f"""G_done:
s_cmp_lg_u32 s23, 0
s_cbranch_scc1 G_slownext
G_epi:
;@ST10
s_setprio 3
s_nop 4""")
for w in range(4):
    for r in range(2):
        A(f"v_permlane32_swap_b32 v{ACC+4*w+r}, v{ACC+4*w+r+2}")
for w in range(4):
    for r in range(2):
        A(f"v_add_f32_dpp v{ACC+4*w+r}, v{ACC+4*w+r+2}, v{ACC+4*w+r} row_ror:8 row_mask:0xf bank_mask:0xf")
A(f"""v_xor_b32 v21, 16, v{AG0}
v_cvt_pk_bf16_f32 v24, v{ACC}, v{ACC+4}
v_cvt_pk_bf16_f32 v25, v{ACC+8}, v{ACC+12}
v_cvt_pk_bf16_f32 v26, v{ACC+1}, v{ACC+5}
v_cvt_pk_bf16_f32 v27, v{ACC+9}, v{ACC+13}
s_mov_b32 exec_lo, 0x00770077
s_mov_b32 exec_hi, 0x00770077
ds_write_b64 v{AG0}, v[24:25]
ds_write_b64 v21, v[26:27]
s_mov_b64 exec, -1
v_xor_b32 v29, 64, v{FA}
s_sub_u32 s36, s17, 8
s_waitcnt lgkmcnt(0)
s_barrier
s_cmp_ge_u32 s36, 6
s_cbranch_scc1 G_fin
ds_read_b128 v[48:51], v{FA}
ds_read_b128 v[52:55], v29
s_mul_i32 s34, s16, 5120
s_waitcnt lgkmcnt(1)
v_mfma_f32_16x16x32_bf16 v[56:59], {r4(FR)}, v[48:51], 0
v_mfma_f32_16x16x32_bf16 v[60:63], {r4(FR+8)}, v[48:51], 0
s_waitcnt lgkmcnt(0)
v_mfma_f32_16x16x32_bf16 v[56:59], {r4(FR+4)}, v[52:55], v[56:59]
v_mfma_f32_16x16x32_bf16 v[60:63], {r4(FR+12)}, v[52:55], v[60:63]
s_nop 5
s_cmp_lt_u32 s36, 4
s_cbranch_scc1 G_nosum""")
for i in range(8):
    A(f"v_add_f32_dpp v{56+i}, v{56+i}, v{56+i} row_ror:8 row_mask:0xf bank_mask:0xf")
A(f"""s_mov_b32 exec_lo, 0x00ff00ff
s_mov_b32 exec_hi, 0x00ff00ff
G_nosum:
v_cvt_pk_bf16_f32 v64, v56, v57
v_cvt_pk_bf16_f32 v65, v58, v59
v_cvt_pk_bf16_f32 v66, v60, v61
v_cvt_pk_bf16_f32 v67, v62, v63
buffer_store_dwordx4 v[64:67], v{FO}, s[12:15], s34 offen sc1
G_fin:
;@STW
;@ST11""")
if opts["stamp"]:
    A("v_mbcnt_lo_u32_b32 v0, -1, 0\nv_mbcnt_hi_u32_b32 v0, -1, v0\ns_lshl_b32 s34, s17, 6\ns_mov_b64 exec, -1\nv_mov_b32 v0, s34")
A(""";@STE2
G_end:
s_endpgm""")
def tid():
    A("""v_mbcnt_lo_u32_b32 v17, -1, 0
v_mbcnt_hi_u32_b32 v17, -1, v17
s_lshl_b32 s34, s17, 6
v_add_u32 v16, s34, v17""")
def slotload(tag):
    A(f"""v_lshrrev_b32 v36, 2, v16
v_mul_u32_u24 v36, {CH}, v36
v_and_b32 v37, 3, v16
v_lshl_add_u32 v33, v37, 4, v36
buffer_load_dwordx4 v[60:63], v33, s[8:11], s3 offen{SC}""")
    lanemask()
    A("s_waitcnt vmcnt(0)")
    for k in range(4): A(f"v_xor_b32 v{60+k}, s{56+k}, v{60+k}")
    A("s_nop 0")
    control()
A(f"""G_slow:
s_mov_b32 s23, 1
s_mov_b32 s27, 0""")
for i in range(16): A(f"v_mov_b32 v{ACC+i}, 0")
A(f"""s_mov_b32 s54, 0
s_mov_b32 s55, 0
s_waitcnt vmcnt(0) lgkmcnt(0)
s_barrier""")
tid()
slotload("a")
A(f"""v_mov_b32 v58, {CNT+128}
s_cmp_lg_u32 s17, 0
s_cbranch_scc1 G_slow0
ds_write_b32 v58, v{Z}
G_slow0:
s_waitcnt vmcnt(0) lgkmcnt(0)
s_barrier
ds_max_u32 v58, v57
s_waitcnt lgkmcnt(0)
s_barrier
ds_read_b32 v35, v58
s_waitcnt lgkmcnt(0)
v_readfirstlane_b32 s45, v35
s_nop 3
s_add_u32 s45, s45, 4
s_branch G_slowround
G_slownext:
s_waitcnt vmcnt(0) lgkmcnt(0)
s_barrier
s_add_u32 s55, s55, 1
s_cmp_lt_u32 s55, 16
s_cbranch_scc1 G_slowround
s_mov_b32 s55, 0
s_add_u32 s54, s54, 4
s_cmp_ge_u32 s54, s45
s_cbranch_scc1 G_epi
G_slowround:""")
tid()
A(f"""v_lshlrev_b32 v36, 4, v16
v_add_u32 v36, {LISTS}, v36
v_mov_b32 v68, {PAD}
v_mov_b32 v69, {PAD}
v_mov_b32 v70, {PAD}
v_mov_b32 v71, {PAD}
ds_write_b128 v36, v[68:71]
ds_write_b128 v36, v[68:71] offset:4096
v_and_b32 v59, 15, v17
v_lshlrev_b32 v59, 2, v59
v_add_u32 v59, {CNT}, v59
ds_write_b32 v59, v{Z}
s_waitcnt lgkmcnt(0)
s_barrier
s_cmp_lg_u32 s17, s55
s_cbranch_scc1 G_slow2""")
slotload("b")
A(f"""v_mov_b32 v39, 1
v_mov_b32 v58, {CNT}
s_cmp_lg_u32 s54, 0
s_cbranch_scc1 G_slowov""")
insert4(60, "s[40:41]", True)
A(f"""s_branch G_slow2
G_slowov:
s_sub_u32 s34, s54, 4
v_add_u32 v37, s34, v37
v_cmp_lt_u32 s[38:39], v37, v57
s_lshl_b32 s36, s34, 4
s_add_u32 s36, s36, {OVO}
v_mov_b32 v38, 0x40000000
v_cndmask_b32 v56, v38, v56, s[38:39]
s_mov_b32 s34, 0x200000
G_spoll:
buffer_load_dwordx4 v[64:67], v56, s[8:11], s36 offen{SC}
s_waitcnt vmcnt(0)""")
untag(64, 57)
A(f"""s_and_b64 vcc, vcc, s[38:39]
s_cbranch_scc0 G_spolld
s_sub_u32 s34, s34, 1
s_cmp_lg_u32 s34, 0
s_cbranch_scc1 G_spoll
G_spolld:""")
insert4(64, "s[38:39]", False)
A(f"""G_slow2:
s_mul_i32 s34, s17, {CAP*4}
s_add_u32 s34, s34, {LISTS}
v_lshrrev_b32 v50, 3, v17
v_lshlrev_b32 v50, 2, v50
v_add_u32 v{LB}, s34, v50
v_and_b32 v48, 7, v17
v_add_u32 v{LB}, 0x200, v{LB}
v_lshl_add_u32 v{OW}, v48, 5, v{LB}
s_movk_i32 s35, {CAP}
s_waitcnt lgkmcnt(0)
s_barrier
s_branch G_round""")
A('.section .rodata,"a"')
G.kd(NAME, NV, 64)
if opts["trace"]:
    go = G.L.index("G_round:"); done = G.L.index("G_done:")
    out = []
    for i, l in enumerate(G.L):
        if l.startswith("s_memtime") and not (go < i < done):
            if l == "s_memtime s[82:83]": l = "s_memtime s[64:65]"
            elif l == "s_memtime s[86:87]": pass
            else: continue
        out.append(l)
    G.L = out
G.write(OUT)
```

```python
import sys, math
from common import *
OUT = sys.argv[1]
opts = dict(stamp=0, pf=0, m0=2, m1=2, m2=2, trace=0, slp=6, sc=1, early=0, pfs=44, dly=8, ep=0, lr=0)
for a in sys.argv[2:]:
    k, v = a.split("="); opts[k] = int(v)
G = Gen(opts["stamp"], 10, 16); A = G.A
NAME = "gather_scatter__kernel_systems_refs_featgraph__graph_kernel"

OVO = 16000
CH = 28416
WS_END = 250 * CH
CAP = 320
QT = 0
WQ = 24576
XS = 32768
WV = XS + 8192
PT = WV + 8192
PTS = 2176
CNT = PT + 16 * PTS
LISTS = CNT + 512
AGG = LISTS + 16 * CAP * 4
PCNT = AGG + 48 * 128
IMG = PCNT + 1024 + 256
OVF = IMG + 16384
RED = PCNT
K2_LDS = max(OVF + 12288, RED + (16 * 2432 if opts['lr'] else 0), LISTS + 15 * CAP * 4 + 1024 * 8 * 4)
assert AGG % 128 == 0 and K2_LDS <= 163840 and PT % 256 == 0, K2_LDS
PAD = 0x1fff30
SC = " sc1" if opts["sc"] == 1 else " sc0 sc1"

A(HDR)
A("""; out[d] = (sum over edges e with dst d of sigmoid(x[src_e] . q[d] / 8) * x[src_e]) @ w_v,  q = bf16(x @ w_q)
;          gathers the x rows 64 edges at a time, computes the logits with dot2 + DPP reduce-scatter, scatters
;          Lists that overflow (skewed graphs) fall back to small rounds that cannot overflow.""")
A(f"; @launch grid=(250,1,1) block=(1024,1,1) lds={K2_LDS}")
A('.amdgcn_target "amdgcn-amd-amdhsa--gfx950"\n.text')

PFS = [int(c) for c in "%04d" % opts["pfs"]]
def pfmask(pos): return sum(1 << (11 + i) for i in range(4) if PFS[i] == pos)
def xpf(pos):
    m = pfmask(pos)
    if not m: return
    A(f"""; some of the waves 11..14 pull their share of x into this die's L2
s_mov_b32 s34, {m}
s_bitcmp1_b32 s34, s17
s_cbranch_scc0 G_nopf{pos}
s_sub_u32 s35, s17, 11
s_mul_i32 s34, s44, 40000
s_lshl_b32 s35, s35, 13
s_add_u32 s34, s34, s35
v_lshlrev_b32 v50, 7, v17
buffer_load_dword v18, v50, s[4:7], s34 offen
G_nopf{pos}:""")
XC, QC, PW, PR, LB, OW, Z, PA = 0, 1, 2, 3, 4, 5, 6, 7
E, X, Q, PP, FR, ACC = 8, 16, 48, 80, 88, 112
U = Q
AG0, FA, FO, RW, RR = 104, 105, 106, 107, 108
NV = 128
def r4(b): return f"v[{b}:{b+3}]"
def gettag(lbl):
    A(f"""s_mov_b32 s35, 0x200000
{lbl}p:
s_waitcnt vmcnt(0)
v_readfirstlane_b32 s56, v78
v_readfirstlane_b32 s57, v79
s_cmp_lg_u32 s56, 0
s_cbranch_scc1 {lbl}d
global_load_dwordx2 v[78:79], v{Z}, s[18:19]{SC}
s_sub_u32 s35, s35, 1
s_cmp_lg_u32 s35, 0
s_cbranch_scc1 {lbl}p
{lbl}d:
s_lshl_b64 s[58:59], s[56:57], 20
s_and_b32 s59, s59, 0xffe00000
s_lshl_b64 s[34:35], s[56:57], 31
s_and_b32 s58, s35, 0xffe00000
s_lshl_b32 s57, s56, 10
s_and_b32 s57, s57, 0xffe00000
s_lshl_b32 s56, s56, 21""")

A(f""".globl {NAME}
.p2align 8
.type {NAME},@function
{NAME}:
s_cmp_ge_u32 s2, 250
s_cbranch_scc1 G_end
s_load_dwordx8 s[48:55], s[0:1], 0
s_load_dwordx8 s[56:63], s[0:1], 32
;@ST0
v_lshrrev_b32 v32, 6, v0
v_and_b32 v17, 63, v0
v_readfirstlane_b32 s17, v32
v_lshlrev_b32 v33, 4, v0
v_lshlrev_b32 v34, 4, v17
s_mul_i32 s3, s2, 10240
v_add_u32 v35, s3, v33
s_and_b32 s43, s2, 7
s_lshr_b32 s44, s2, 3
s_mul_i32 s16, s43, 31
s_min_u32 s34, s43, 2
s_add_u32 s16, s16, s34
s_add_u32 s16, s16, s44
s_mov_b32 s6, 1280000
s_mov_b32 s7, 0x20000
s_mov_b32 s10, {WS_END}
s_mov_b32 s11, 0x20000
s_mov_b32 s14, 1280000
s_mov_b32 s15, 0x20000
s_mov_b32 s23, 0
v_and_b32 v48, 7, v17
v_lshrrev_b32 v49, 4, v17
v_mov_b32 v{Z}, 0
s_cmp_ge_u32 s17, 10
s_cbranch_scc1 G_helper
s_setprio 3
s_waitcnt lgkmcnt(0)
global_load_dwordx4 v[60:63], v35, s[52:53] nt
global_load_dwordx4 v[64:67], v35, s[50:51] nt
s_mov_b64 s[4:5], s[48:49]
s_mov_b64 s[8:9], s[62:63]
s_mov_b64 s[12:13], s[58:59]
s_mov_b64 s[18:19], s[60:61]
s_branch G_init
G_helper:
v_lshlrev_b32 v50, 1, v49
v_xor_b32 v50, v48, v50
v_and_b32 v51, 0x380, v34
v_lshl_add_u32 v50, v50, 4, v51
s_and_b32 s45, s17, 1
s_lshl_b32 s45, s45, 12
s_waitcnt lgkmcnt(0)
s_mov_b64 s[4:5], s[48:49]
s_mov_b64 s[8:9], s[62:63]
s_mov_b64 s[12:13], s[58:59]
s_mov_b64 s[18:19], s[60:61]
s_mov_b32 s63, 0x20000
s_cmp_lg_u32 s2, 0
s_cbranch_scc1 G_notagw
s_cmp_lg_u32 s17, 15
s_cbranch_scc1 G_notagw
s_memrealtime s[34:35]
s_waitcnt lgkmcnt(0)
s_or_b32 s34, s34, 1
v_mov_b32 v52, s34
v_mov_b32 v53, s35
v_mov_b32 v54, s34
v_mov_b32 v55, s35
s_mov_b64 exec, 0xff
global_store_dwordx4 v34, v[52:55], s[18:19]{SC}
s_mov_b64 exec, -1
G_notagw:
s_cmp_ge_u32 s17, 14
s_cselect_b32 s60, s56, s54
s_cselect_b32 s61, s57, s55
s_mov_b32 s34, {WQ}
s_cselect_b32 s34, {WV}, s34
s_mov_b32 s62, 8192
s_mov_b32 s35, s45
s_lshr_b32 s36, s17, 1
s_cmp_lg_u32 s36, 6
s_cbranch_scc1 G_hw
s_mov_b32 s60, s4
s_mov_b32 s61, s5
s_mov_b32 s62, 1280000
s_mov_b32 s34, {XS}
s_mul_i32 s35, s16, 5120
s_add_u32 s35, s35, s45
s_branch G_hd
G_hw:
v_mov_b32 v50, v34
G_hd:
s_add_u32 m0, s34, s45""")
for i in range(4):
    A(("s_nop 0\n" if i == 0 else "") + f"buffer_load_dwordx4 v50, s[60:63], s35 offen offset:{i*1024} lds")
xpf(0)
if opts["pf"]:
    A("""s_cmp_lg_u32 s17, 15
s_cbranch_scc1 G_init
s_mul_i32 s34, s44, 40000
s_add_u32 s34, s34, 32768
v_lshlrev_b32 v50, 7, v17
buffer_load_dword v18, v50, s[4:7], s34 offen""")
A(f"""G_init:
v_add_u32 v36, {IMG}, v33
v_mov_b32 v84, {PAD}
v_mov_b32 v85, {PAD}
v_mov_b32 v86, {PAD}
v_mov_b32 v87, {PAD}
v_lshlrev_b32 v59, 2, v0
v_add_u32 v59, {PCNT}, v59
ds_write_b128 v36, v[84:87]
s_cmp_ge_u32 s17, 12
s_cbranch_scc1 G_noz
ds_write_b128 v36, v[84:87] offset:16384
s_cmp_ge_u32 s17, 5
s_cbranch_scc1 G_noz
ds_write_b32 v59, v{Z}
G_noz:
s_movk_i32 s24, 512
s_mov_b32 s28, {f32(-0.125*math.log2(math.e))}
s_movk_i32 s29, {CAP*4}
s_movk_i32 s25, -40
s_mul_i32 s27, s2, {CH}
s_mov_b32 s43, {PAD}
v_mov_b32 v39, 1
v_mov_b32 v58, {PCNT}
v_mov_b32 v57, {IMG}
s_waitcnt lgkmcnt(0)
s_barrier
v_add_u32 v35, {LISTS}, v33
v_mov_b32 v88, 0
v_mov_b32 v89, 0
v_mov_b32 v90, 0
v_mov_b32 v91, 0
ds_write_b128 v35, v[84:87]
s_mul_i32 s26, s17, {PTS}
s_add_u32 s26, s26, {PT}
v_lshlrev_b32 v51, 1, v17
v_and_b32 v51, 48, v51
v_xor_b32 v{PR}, v51, v34
v_add_u32 v{PR}, s26, v{PR}
ds_write_b128 v{PR}, v[88:91]
ds_write_b128 v{PR}, v[88:91] offset:1088
s_cmp_lt_u32 s17, 10
s_cbranch_scc1 G_edges
s_cmp_ge_u32 s17, 14
s_cbranch_scc1 G_z2
ds_write_b128 v35, v[84:87] offset:6144
s_branch G_pb
G_z2:
v_lshlrev_b32 v50, 2, v17
v_add_u32 v50, {CNT}, v50
ds_write_b32 v50, v88
s_branch G_pb
G_edges:
s_waitcnt vmcnt(1)
;@ST1""")
for i in range(4): A(f"v_mul_u32_u24 v{76+i}, 0xcccd, v{60+i}")
for i in range(4): A(f"v_lshrrev_b32 v{76+i}, 21, v{76+i}")
for i in range(4): A(f"v_lshl_add_u32 v{68+i}, v{76+i}, 2, v58")
for i in range(4): A(f"ds_add_rtn_u32 v{72+i}, v{68+i}, v39")
for i in range(4): A(f"v_lshl_add_u32 v{80+i}, v{76+i}, 6, v57")
for i in range(4): A(f"v_mad_i32_i24 v{76+i}, v{76+i}, s25, v{60+i}")
for i in (1, 3): A(f"v_bfe_u32 v{60+i}, v{76+i}, 5, 1")
for i in (1, 3): A(f"v_lshl_add_u32 v{76+i}, v{60+i}, 3, v{76+i}")
A("s_waitcnt vmcnt(0)")
for i in range(4): A(f"v_lshl_or_b32 v{76+i}, v{64+i}, 7, v{76+i}")
A("s_waitcnt lgkmcnt(0)")
for i in range(4): A(f"v_cmp_lt_u32 s[{46+2*i}:{47+2*i}], 14, v{72+i}")
for i in range(4): A(f"v_lshl_add_u32 v{80+i}, v{72+i}, 2, v{80+i}")
for i in range(4):
    A(f"s_not_b64 exec, s[{46+2*i}:{47+2*i}]")
    A(f"ds_write_b32 v{80+i}, v{76+i}")
A(f"""s_mov_b64 exec, -1
s_or_b64 s[38:39], s[46:47], s[48:49]
s_or_b64 s[40:41], s[50:51], s[52:53]
s_or_b64 s[38:39], s[38:39], s[40:41]
G_pb:
s_waitcnt lgkmcnt(0)
s_barrier
;@ST2
global_load_dwordx2 v[98:99], v{Z}, s[18:19]{SC}""")
A(f"""s_cmp_ge_u32 s17, 4
s_cbranch_scc1 G_noalloc
ds_read_b32 v84, v59
v_add_u32 v86, {IMG+60}, v33
v_lshl_add_u32 v86, v33, 1, v86
v_add_u32 v86, v33, v86
s_waitcnt lgkmcnt(0)
v_cmp_lt_u32 vcc, 15, v84
v_subrev_u32 v84, 12, v84
v_lshrrev_b32 v84, 2, v84
s_and_saveexec_b64 s[40:41], vcc
ds_add_rtn_u32 v85, v58, v84 offset:1024
s_waitcnt lgkmcnt(0)
v_lshl_or_b32 v84, v84, 10, v85
ds_write_b32 v59, v85
ds_write_b32 v86, v84
s_mov_b64 exec, -1
s_waitcnt lgkmcnt(0)
G_noalloc:""")
xpf(1)
A(f"""s_barrier
s_cmp_ge_u32 s17, 10
s_cbranch_scc1 G_pd
s_cmp_eq_u64 s[38:39], 0
s_cbranch_scc1 G_pd
v_mov_b32 v57, {OVF-60}""")
for i in range(4): A(f"ds_read_b32 v{80+i}, v{68+i}")
for i in range(4): A(f"v_lshl_add_u32 v{72+i}, v{72+i}, 2, v57")
A("s_waitcnt lgkmcnt(0)")
for i in range(4): A(f"v_lshl_add_u32 v{80+i}, v{80+i}, 4, v{72+i}")
for i in range(4):
    A(f"s_mov_b64 exec, s[{46+2*i}:{47+2*i}]")
    A(f"ds_write_b32 v{80+i}, v{76+i}")
A(f"""s_mov_b64 exec, -1
s_waitcnt lgkmcnt(0)
G_pd:
s_barrier
;@ST3
v_mov_b32 v78, v92
s_cmp_ge_u32 s17, 10
s_cbranch_scc1 G_nost
ds_read_b128 v[84:87], v36
ds_read_b128 v[88:91], v36 offset:10240
ds_read_b32 v80, v58 offset:1024""".replace("v_mov_b32 v78, v92\n", ""))
def gettag2(lbl):
    n = len(G.L); gettag(lbl)
    G.L[n:] = [l.replace("v[78:79]", "v[98:99]").replace("v78", "v98").replace("v79", "v99") for l in G.L[n:]]
gettag2("G_ta")
def tagor(b):
    for k in range(4): A(f"v_or_b32 v{b+k}, s{56+k}, v{b+k}")
A("s_waitcnt lgkmcnt(2)")
tagor(84)
A(f"buffer_store_dwordx4 v[84:87], v33, s[8:11], s27 offen{SC}")
A("s_waitcnt lgkmcnt(0)")
tagor(88)
A(f"""v_readfirstlane_b32 s34, v80
s_add_u32 s35, s27, 10240
s_movk_i32 s36, 360
v_cmp_gt_u32 vcc, s36, v0
s_cmp_ge_u32 s17, 6
s_cbranch_scc1 G_st2
s_and_saveexec_b64 s[40:41], vcc
buffer_store_dwordx4 v[88:91], v33, s[8:11], s35 offen{SC}
s_mov_b64 exec, -1
G_st2:
s_add_u32 s34, s34, 7
s_and_b32 s34, s34, -8
s_lshl_b32 s36, s17, 6
s_add_u32 s35, s27, {OVO}
v_mov_b32 v81, v0
v_add_u32 v82, {OVF-IMG}, v36
G_ovst:
s_cmp_ge_u32 s36, s34
s_cbranch_scc1 G_stdone
v_cmp_gt_u32 vcc, s34, v81
ds_read_b128 v[92:95], v82
s_waitcnt lgkmcnt(0)""")
tagor(92)
A(f"""s_and_saveexec_b64 s[40:41], vcc
buffer_store_dwordx4 v[92:95], v33, s[8:11], s35 offen{SC}
s_mov_b64 exec, -1
s_add_u32 s36, s36, 640
s_add_u32 s35, s35, 10240
v_add_u32 v81, 640, v81
v_add_u32 v82, 10240, v82
s_branch G_ovst
G_nost:""")
gettag2("G_tb")
A(f"""G_stdone:
;@ST4
s_setprio 0
s_barrier
;@ST5""")
xpf(2)
A(f"""; granule address: producer p = tid>>2, granule tid&3
v_lshrrev_b32 v36, 2, v0
v_mul_u32_u24 v36, {CH}, v36
v_and_b32 v37, 3, v0
v_lshl_add_u32 v33, v37, 4, v36
s_lshl_b32 s3, s16, 6
v_mov_b32 v38, 0x40000000
s_lshr_b32 s36, s17, 2
s_and_b32 s37, s17, 3
v_and_b32 v51, 15, v17
s_cmp_ge_u32 s17, 12
s_cbranch_scc1 G_noq
v_lshrrev_b32 v52, 2, v51
v_lshl_add_u32 v52, v49, 3, v52
v_lshlrev_b32 v52, 7, v52
v_and_b32 v53, 3, v17
v_lshl_add_u32 v52, v53, 3, v52
s_lshl_b32 s35, s37, 5
v_add_u32 v52, s35, v52
ds_read_b64_tr_b16 v[76:77], v52 offset:{WQ}
ds_read_b64_tr_b16 v[78:79], v52 offset:{WQ+512}
ds_read_b64_tr_b16 v[80:81], v52 offset:{WQ+4096}
ds_read_b64_tr_b16 v[82:83], v52 offset:{WQ+4096+512}
v_and_b32 v53, 6, v51
v_xor_b32 v53, v49, v53
v_lshlrev_b32 v53, 4, v53
s_cmp_eq_u32 s36, 2
s_cselect_b32 s35, 7, 15
v_and_b32 v54, s35, v51
v_lshl_add_u32 v53, v54, 7, v53
s_lshl_b32 s35, s36, 11
v_add_u32 v53, s35, v53
v_xor_b32 v54, 64, v53
ds_read_b128 v[68:71], v53 offset:{XS}
ds_read_b128 v[72:75], v54 offset:{XS}
s_lshl_b32 s35, s37, 1
v_lshrrev_b32 v52, 1, v49
v_or_b32 v52, s35, v52
v_xor_b32 v52, s36, v52
v_xor_b32 v52, v51, v52
v_lshlrev_b32 v52, 4, v52
v_lshl_add_u32 v52, v51, 9, v52
v_and_b32 v53, 1, v49
v_lshl_add_u32 v52, v53, 3, v52
s_lshl_b32 s35, s36, 13
v_add_u32 v52, s35, v52
v_xor_b32 v53, 0x80, v52
s_waitcnt lgkmcnt(1)
v_mfma_f32_16x16x32_bf16 v[100:103], v[76:79], v[68:71], 0
s_waitcnt lgkmcnt(0)
v_mfma_f32_16x16x32_bf16 v[100:103], v[80:83], v[72:75], v[100:103]
G_noq:
v_lshlrev_b32 v54, 4, v48
v_or_b32 v{XC}, s17, v54
v_and_b32 v55, 1, v49
v_lshl_add_u32 v55, v55, 3, v48
v_xor_b32 v55, s17, v55
v_lshlrev_b32 v{QC}, 4, v55
v_and_b32 v50, 0x380, v34
v_lshlrev_b32 v55, 1, v17
v_and_or_b32 v50, v55, 48, v50
v_lshrrev_b32 v55, 2, v48
v_mul_u32_u24 v55, 1088, v55
v_and_b32 v56, 3, v17
v_lshl_add_u32 v50, v56, 2, v50
v_add3_u32 v{PW}, v50, v55, s26
s_mul_i32 s34, s17, {CAP*4}
s_add_u32 s34, s34, {LISTS}
v_lshrrev_b32 v50, 3, v17
v_lshlrev_b32 v50, 2, v50
v_add_u32 v{LB}, s34, v50
v_lshl_add_u32 v{OW}, v48, 5, v{LB}
s_cmp_ge_u32 s17, 12
s_cbranch_scc1 G_noq2
v_cvt_pk_bf16_f32 v96, v100, v101
v_cvt_pk_bf16_f32 v97, v102, v103
ds_write_b64 v52, v[96:97] offset:{QT}
ds_write_b64 v53, v[96:97] offset:{QT}
G_noq2:
v_and_b32 v50, 2, v49
v_xor_b32 v50, v56, v50
v_and_b32 v55, 1, v49
v_lshl_add_u32 v50, v55, 2, v50
s_and_b32 s34, s17, 6
v_xor_b32 v50, s34, v50
v_lshlrev_b32 v50, 4, v50
v_lshl_add_u32 v50, v56, 11, v50
v_and_b32 v55, 4, v17
v_lshl_add_u32 v50, v55, 1, v50
s_lshl_b32 s34, s17, 7
s_add_u32 s34, s34, {AGG}
v_add_u32 v{AG0}, s34, v50
s_mul_i32 s34, s17, 2432
s_add_u32 s34, s34, {RED}
v_lshrrev_b32 v50, 3, v17
v_mul_u32_u24 v50, 144, v50
v_add3_u32 v{RW}, v50, v54, s34
v_lshrrev_b32 v55, 2, v48
v_mul_u32_u24 v55, 1216, v55
v_add3_u32 v50, v50, v55, s34
v_lshl_add_u32 v{RR}, v56, 2, v50
v_mov_b32 v{FA}, 0
v_mov_b32 v{FO}, 0
s_sub_u32 s36, s17, 8
s_cmp_ge_u32 s36, 6
s_cbranch_scc1 G_nofr
s_and_b32 s37, s36, 1
s_lshr_b32 s36, s36, 1
v_lshrrev_b32 v50, 2, v51
v_lshl_add_u32 v50, v49, 2, v50
v_lshlrev_b32 v50, 8, v50
v_lshl_add_u32 v50, v56, 4, v50
s_lshl_b32 s35, s37, 6
s_add_u32 s34, s35, {WV}
v_add_u32 v50, s34, v50""")
for f in range(2):
    for u in range(2):
        for hh in range(2):
            d = FR + 8*f + 4*u + 2*hh
            A(f"ds_read_b64_tr_b16 v[{d}:{d+1}], v50 offset:{4096*u+128*hh+8*f}")
A(f"""v_and_b32 v50, 6, v51
v_xor_b32 v50, v49, v50
v_lshlrev_b32 v50, 4, v50
v_lshl_add_u32 v50, v51, 7, v50
s_lshl_b32 s34, s36, 11
v_add_u32 v55, s34, v50
v_add_u32 v{FA}, {AGG}, v55
v_lshlrev_b32 v50, 7, v51
v_lshl_add_u32 v50, v49, 4, v50
s_add_u32 s34, s34, s35
v_add_u32 v{FO}, s34, v50
G_nofr:""")
for i in range(16): A(f"v_mov_b32 v{ACC+i}, 0")
for i in list(range(8, 16)) + list(range(24, 32)): A(f"v_mov_b32 v{X+i}, 0")
def untag(b, t):
    for k in range(4): A(f"v_xor_b32 v{b+k}, s{56+k}, v{b+k}")
    A(f"v_or3_b32 v{t}, v{b}, v{b+1}, v{b+2}\nv_or_b32 v{t}, v{t}, v{b+3}\nv_cmp_le_u32 vcc, s42, v{t}\ns_nop 1")
def lanemask():
    A("""s_mov_b64 s[40:41], -1
s_cmp_lg_u32 s17, 15
s_cselect_b32 s41, -1, 0xff
s_mov_b32 s42, 0x200000""")
def control():
    A(f"""s_nop 0
v_mov_b32_dpp v56, v63 quad_perm:[3,3,3,3] row_mask:0xf bank_mask:0xf
v_cmp_ne_u32 vcc, s43, v56
v_lshrrev_b32 v57, 10, v56
v_and_b32 v56, 0x3ff, v56
s_and_b64 vcc, vcc, s[40:41]
v_lshl_add_u32 v56, v56, 4, v33
v_cndmask_b32 v57, 0, v57, vcc""")
A(f"""v_mov_b32 v58, {CNT}
v_lshl_add_u32 v59, v17, 2, v58
{'s_waitcnt lgkmcnt(0)'+chr(10)+'s_barrier' if opts['early'] else ''}
;@ST6
s_setprio 3""")
lanemask()
A(f"""s_mov_b32 s34, 0x200000
G_poll:
s_sleep {opts["slp"]}
buffer_load_dwordx4 v[60:63], v33, s[8:11], s3 offen{SC}
s_waitcnt vmcnt(0)""")
untag(60, 56)
A(f"""s_and_b64 vcc, vcc, s[40:41]
s_cbranch_scc0 G_polld
s_mov_b64 exec, vcc
s_sub_u32 s34, s34, 1
s_cmp_lg_u32 s34, 0
s_cbranch_scc1 G_poll
G_polld:
s_mov_b64 exec, -1
;@ST7""")
control()
A(f"""v_cmp_lt_u32 s[38:39], v37, v57
v_cmp_lt_u32 vcc, 4, v57
s_mov_b32 s36, {OVO}
v_cndmask_b32 v56, v38, v56, s[38:39]
s_cbranch_vccz G_noflag
v_mov_b32 v64, 0xffff
ds_write_b32 v58, v64 offset:64
G_noflag:
s_cmp_eq_u64 s[38:39], 0
s_cbranch_scc1 G_noov
buffer_load_dwordx4 v[64:67], v56, s[8:11], s36 offen{SC}
G_noov:""")

def insert4(ebase, lanes, main):
    for i in range(4):
        A(f"v_cmp_ne_u32 s[{46+2*i}:{47+2*i}], s43, v{ebase+i}")
    for i in range(4):
        A(f"v_and_b32 v{80+i}, 15, v{ebase+i}")
    for i in range(4):
        A(f"v_lshl_add_u32 v{84+i}, v{80+i}, 2, v58")
    if main:
        A("s_and_b32 s52, s52, 0x77777777\ns_and_b32 s53, s53, 0x77777777")
    for i in range(4):
        A(f"s_and_b64 s[{46+2*i}:{47+2*i}], s[{46+2*i}:{47+2*i}], {lanes}")
        A(f"s_mov_b64 exec, s[{46+2*i}:{47+2*i}]")
        A(f"ds_add_rtn_u32 v{68+i}, v{84+i}, v39")
    A("s_mov_b64 exec, -1")
    for i in range(4):
        A(f"v_mad_u32_u24 v{80+i}, v{80+i}, s29, v58")
    for i in range(4):
        A("s_waitcnt lgkmcnt(3)")
        A(f"v_lshl_add_u32 v{80+i}, v{68+i}, 2, v{80+i}")
        A(f"s_mov_b64 exec, s[{46+2*i}:{47+2*i}]")
        A(f"ds_write_b32 v{80+i}, v{ebase+i} offset:{LISTS-CNT}")
        A("s_mov_b64 exec, -1")

insert4(60, "s[40:41]", True)
A(";@ST8")
A(f"""s_cmp_eq_u64 s[38:39], 0
s_cbranch_scc1 G_ins2
s_mov_b32 s34, 0x200000
G_poll2:
s_waitcnt vmcnt(0)""")
untag(64, 57)
A(f"""s_and_b64 vcc, vcc, s[38:39]
s_cbranch_scc0 G_poll2d
buffer_load_dwordx4 v[64:67], v56, s[8:11], s36 offen{SC}
s_sub_u32 s34, s34, 1
s_cmp_lg_u32 s34, 0
s_cbranch_scc1 G_poll2
G_poll2d:""")
insert4(64, "s[38:39]", False)
A("G_ins2:")
xpf(3)

def read_e():
    for k in range(4):
        A(f"ds_read2_b32 v[{E+2*k}:{E+2*k+1}], v{LB} offset0:{16*k} offset1:{16*k+8}")
def xa(j): A(f"v_xor_b32 v{X+4*j}, v{E+j}, v{XC}")
def ld(j): A(f"buffer_load_dwordx4 {r4(X+4*j)}, v{X+4*j}, s[4:7], 0 offen")
def qa(n=8):
    for j in range(n):
        A(f"v_mad_legacy_u16 v{E+j}, v{E+j}, s24, v{QC}")
def issue_x(tag):
    for j in range(8): xa(j)
    for j in range(8): ld(j)
    qa()
def issue_part(tag):
    for j in range(8):
        if j in (2, 4, 6):
            A(f"s_cmp_le_i32 s20, {8*j}\ns_cbranch_scc1 G_xd{tag}")
        xa(j); ld(j)
    A(f"G_xd{tag}:")
    qa()
A(f"""G_inserted:
s_movk_i32 s35, {CAP}
s_mov_b32 s30, 0xcccccccc
s_mov_b32 s31, 0xcccccccc
s_mov_b32 s32, 0xaaaaaaaa
s_mov_b32 s33, 0xaaaaaaaa
s_mov_b32 s27, 0""")
A(f"""v_add_u32 v{LB}, 0x200, v{LB}
v_add_u32 v{OW}, 0x200, v{OW}
s_waitcnt lgkmcnt(0)
s_barrier""")
A(f""";@ST9
G_round:
ds_read_b32 v48, v59""")
read_e()
A(f"""ds_read_b32 v{PA}, v{OW}
s_waitcnt lgkmcnt(5)
v_cmp_lt_u32 vcc, s35, v48
v_readlane_b32 s21, v48, s17
s_cmp_lg_u32 s23, 0
s_cbranch_scc1 G_go
s_and_b32 s34, vcc_lo, 0x1ffff
s_cbranch_scc1 G_slow
G_go:
s_add_u32 s20, s21, 63
s_lshr_b32 s21, s20, 6
s_max_u32 s21, s21, 1
s_sub_u32 s21, s21, 1
s_lshl_b32 s34, s21, 6
s_sub_i32 s20, s20, 63
s_sub_i32 s20, s20, s34
s_cmp_eq_u32 s21, 2
s_cbranch_scc1 G_hit
s_lshl_b32 s34, s21, 8
s_sub_u32 s34, s34, 0x200
v_add_u32 v{LB}, s34, v{LB}
v_add_u32 v{OW}, s34, v{OW}""")
read_e()
A(f"""ds_read_b32 v{PA}, v{OW}
G_hit:
s_setprio 3
s_waitcnt lgkmcnt(1)""")
issue_part("0")
A("s_setprio 2")
def Pj(j): return PP + j
def movs(half):
    for w in range(4):
        for jp in range(2):
            j = 4*half + 2*jp
            d = U + 16*half + 4*w + 2*jp
            a = X + 4*j + (w & 2); b = X + 4*(j+1) + (w & 2)
            A(f"v_pk_mov_b32 v[{d}:{d+1}], v[{a}:{a+1}], v[{b}:{b+1}] op_sel:[{w&1},{w&1}]")
def dots(half):
    for w in range(4):
        for jj in range(4):
            j = 4*half + jj
            c = "0" if w == 0 else f"v{Pj(j)}"
            A(f"v_dot2_f32_bf16 v{Pj(j)}, v{X+4*j+w}, v{Q+4*j+w}, {c}")
def tail(full):
    T = X
    if opts["lr"]:
        A(f"s_waitcnt lgkmcnt(0)\nv_bitop3_b32 v{PA}, v{PA}, 48, v{PW} bitop3:0x6a")
        A(f"""v_add_f32 v{Pj(0)}, v{Pj(0)}, v{Pj(1)}
v_add_f32 v{Pj(2)}, v{Pj(2)}, v{Pj(3)}
v_add_f32 v{Pj(4)}, v{Pj(4)}, v{Pj(5)}
v_add_f32 v{Pj(6)}, v{Pj(6)}, v{Pj(7)}
v_add_f32 v{Pj(0)}, v{Pj(0)}, v{Pj(2)}
v_add_f32 v{Pj(4)}, v{Pj(4)}, v{Pj(6)}
v_add_f32 v{Pj(4)}, v{Pj(0)}, v{Pj(4)}""")
    for i in range(0 if opts["lr"] else 4):
        A(f"v_add_f32_dpp v{Pj(i)}, v{Pj(i)}, v{Pj(i)} row_half_mirror row_mask:0xf bank_mask:0x5")
    if full and not opts["lr"]:
        for i in range(4):
            A(f"v_add_f32_dpp v{Pj(i)}, v{Pj(i+4)}, v{Pj(i+4)} row_half_mirror row_mask:0xf bank_mask:0xa")
    if not opts["lr"]:
        A(f"v_bitop3_b32 v{PA}, v{PA}, 48, v{PW} bitop3:0x6a")
        for i in range(4):
            A(f"v_add_f32_dpp v{Pj(4+i)}, v{Pj(i)}, v{Pj(i)} quad_perm:[2,3,0,1] row_mask:0xf bank_mask:0xf")
        A(f"""v_cndmask_b32 v{Pj(0)}, v{Pj(4)}, v{Pj(6)}, s[30:31]
v_cndmask_b32 v{Pj(1)}, v{Pj(5)}, v{Pj(7)}, s[30:31]
s_nop 0
v_add_f32_dpp v{Pj(2)}, v{Pj(0)}, v{Pj(0)} quad_perm:[1,0,3,2] row_mask:0xf bank_mask:0xf
v_add_f32_dpp v{Pj(3)}, v{Pj(1)}, v{Pj(1)} quad_perm:[1,0,3,2] row_mask:0xf bank_mask:0xf
v_cndmask_b32 v{Pj(4)}, v{Pj(2)}, v{Pj(3)}, s[32:33]""")
    A(f"""v_mul_f32 v{Pj(4)}, s28, v{Pj(4)}
v_exp_f32 v{Pj(4)}, v{Pj(4)}
s_nop 0
v_add_f32 v{Pj(4)}, 1.0, v{Pj(4)}
v_rcp_f32 v{Pj(4)}, v{Pj(4)}
s_nop 0
v_cvt_pk_bf16_f32 v{Pj(5)}, v{Pj(4)}, 0
v_cvt_pk_bf16_f32 v{Pj(4)}, 0, v{Pj(4)}
ds_write2_b32 v{PA}, v{Pj(5)}, v{Pj(4)} offset0:0 offset1:16
ds_read_b128 {r4(T)}, v{PR}""")
    if full:
        A(f"""ds_read_b128 {r4(T+4)}, v{PR} offset:1088
ds_write2_b32 v{PA}, v{Z}, v{Z} offset0:0 offset1:16
ds_read_b32 v{PA}, v{OW}
s_waitcnt lgkmcnt(3)""")
    else:
        A(f"""ds_write2_b32 v{PA}, v{Z}, v{Z} offset0:0 offset1:16
ds_read_b32 v{PA}, v{OW}
s_waitcnt lgkmcnt(2)""")
    for w in range(4):
        A(f"v_mfma_f32_16x16x32_bf16 {r4(ACC+4*w)}, {r4(U+4*w)}, {r4(T)}, {r4(ACC+4*w)}")
    if full:
        A("s_waitcnt lgkmcnt(2)")
        for w in range(4):
            A(f"v_mfma_f32_16x16x32_bf16 {r4(ACC+4*w)}, {r4(U+16+4*w)}, {r4(T+4)}, {r4(ACC+4*w)}")

def TR(i):
    if opts["trace"] and i < 12: A(f"s_memtime s[{64+2*i}:{65+2*i}]")
def body(tag, mode, prio, full=True, first=False):
    tb = {"h": 1, "b": 1, "c": 4, "d": 7}[tag]
    for j in range(8 if full else 4):
        A(f"ds_read_b128 {r4(Q+4*j)}, v{E+j} offset:{QT}")
    A(f"""v_subrev_u32 v{LB}, 0x100, v{LB}
v_subrev_u32 v{OW}, 0x100, v{OW}""")
    read_e()
    if prio is not None: A(f"s_setprio {prio}")
    A("s_sub_i32 s21, s21, 1")
    for half in range(2 if full else 1):
        A(f"s_waitcnt vmcnt({0 if first else 4-4*half}) lgkmcnt({(8 if full else 4) - 4*half})")
        if half == (1 if full else 0): TR(tb)
        dots(half)
    if opts["lr"]:
        n = len(G.L)
        for half in range(2 if full else 1): movs(half)
        mv = G.L[n:]; del G.L[n:]
        G.L.extend(mv[:3])
        A(f"ds_write_b128 v{RW}, {r4(PP)}")
        if full: A(f"ds_write_b128 v{RW}, {r4(PP+4)} offset:1216")
        for k in range(4):
            A(f"ds_read2_b32 v[{PP+2*k}:{PP+2*k+1}], v{RR} offset0:{8*k} offset1:{8*k+4}")
        G.L.extend(mv[3:])
    else:
        for half in range(2 if full else 1): movs(half)
    tail(full)
    TR(tb+1)
    A(f"s_cmp_lt_i32 s21, 0\ns_cbranch_scc1 G_nonext{tag}")
    issue_x(tag)
    A(f"G_nonext{tag}:")
    TR(tb+2)
A("G_disp:")
A("s_cmp_gt_i32 s20, 32\ns_cbranch_scc1 G_b0")
body("h", opts["m0"], None, full=False, first=True)
A("s_branch G_b1x\nG_b0:")
body("b", opts["m0"], None, first=True)
A("G_b1x:\ns_cmp_lt_i32 s21, 0\ns_cbranch_scc1 G_done")
body("c", opts["m1"], 1)
A("s_cmp_lt_i32 s21, 0\ns_cbranch_scc1 G_done")
A("G_loop:")
body("d", opts["m2"], 0)
A("s_cmp_ge_i32 s21, 0\ns_cbranch_scc1 G_loop")
A(f"""G_done:
s_cmp_lg_u32 s23, 0
s_cbranch_scc1 G_slownext
G_epi:
;@ST10
s_setprio 3
s_nop 4""")
for w in range(4):
    for r in range(2):
        A(f"v_permlane32_swap_b32 v{ACC+4*w+r}, v{ACC+4*w+r+2}")
for w in range(4):
    for r in range(2):
        A(f"v_add_f32_dpp v{ACC+4*w+r}, v{ACC+4*w+r+2}, v{ACC+4*w+r} row_ror:8 row_mask:0xf bank_mask:0xf")
A(f"""v_xor_b32 v21, 16, v{AG0}
v_cvt_pk_bf16_f32 v24, v{ACC}, v{ACC+4}
v_cvt_pk_bf16_f32 v25, v{ACC+8}, v{ACC+12}
v_cvt_pk_bf16_f32 v26, v{ACC+1}, v{ACC+5}
v_cvt_pk_bf16_f32 v27, v{ACC+9}, v{ACC+13}
s_mov_b32 exec_lo, 0x00770077
s_mov_b32 exec_hi, 0x00770077
ds_write_b64 v{AG0}, v[24:25]
ds_write_b64 v21, v[26:27]
s_mov_b64 exec, -1
v_xor_b32 v29, 64, v{FA}
s_sub_u32 s36, s17, 8
s_waitcnt lgkmcnt(0)
s_barrier
s_cmp_ge_u32 s36, 6
s_cbranch_scc1 G_fin
ds_read_b128 v[48:51], v{FA}
ds_read_b128 v[52:55], v29
s_mul_i32 s34, s16, 5120
s_waitcnt lgkmcnt(1)
v_mfma_f32_16x16x32_bf16 v[56:59], {r4(FR)}, v[48:51], 0
v_mfma_f32_16x16x32_bf16 v[60:63], {r4(FR+8)}, v[48:51], 0
s_waitcnt lgkmcnt(0)
v_mfma_f32_16x16x32_bf16 v[56:59], {r4(FR+4)}, v[52:55], v[56:59]
v_mfma_f32_16x16x32_bf16 v[60:63], {r4(FR+12)}, v[52:55], v[60:63]
s_nop 5
s_cmp_lt_u32 s36, 4
s_cbranch_scc1 G_nosum""")
for i in range(8):
    A(f"v_add_f32_dpp v{56+i}, v{56+i}, v{56+i} row_ror:8 row_mask:0xf bank_mask:0xf")
A(f"""s_mov_b32 exec_lo, 0x00ff00ff
s_mov_b32 exec_hi, 0x00ff00ff
G_nosum:
v_cvt_pk_bf16_f32 v64, v56, v57
v_cvt_pk_bf16_f32 v65, v58, v59
v_cvt_pk_bf16_f32 v66, v60, v61
v_cvt_pk_bf16_f32 v67, v62, v63
buffer_store_dwordx4 v[64:67], v{FO}, s[12:15], s34 offen sc1
G_fin:
;@STW
;@ST11""")
if opts["stamp"]:
    A("v_mbcnt_lo_u32_b32 v0, -1, 0\nv_mbcnt_hi_u32_b32 v0, -1, v0\ns_lshl_b32 s34, s17, 6\ns_mov_b64 exec, -1\nv_mov_b32 v0, s34")
A(""";@STE2
G_end:
s_endpgm""")
def tid():
    A("""v_mbcnt_lo_u32_b32 v17, -1, 0
v_mbcnt_hi_u32_b32 v17, -1, v17
s_lshl_b32 s34, s17, 6
v_add_u32 v16, s34, v17""")
def slotload(tag):
    A(f"""v_lshrrev_b32 v36, 2, v16
v_mul_u32_u24 v36, {CH}, v36
v_and_b32 v37, 3, v16
v_lshl_add_u32 v33, v37, 4, v36
buffer_load_dwordx4 v[60:63], v33, s[8:11], s3 offen{SC}""")
    lanemask()
    A("s_waitcnt vmcnt(0)")
    for k in range(4): A(f"v_xor_b32 v{60+k}, s{56+k}, v{60+k}")
    A("s_nop 0")
    control()
A(f"""G_slow:
s_mov_b32 s23, 1
s_mov_b32 s27, 0""")
for i in range(16): A(f"v_mov_b32 v{ACC+i}, 0")
A(f"""s_mov_b32 s54, 0
s_mov_b32 s55, 0
s_waitcnt vmcnt(0) lgkmcnt(0)
s_barrier""")
tid()
slotload("a")
A(f"""v_mov_b32 v58, {CNT+128}
s_cmp_lg_u32 s17, 0
s_cbranch_scc1 G_slow0
ds_write_b32 v58, v{Z}
G_slow0:
s_waitcnt vmcnt(0) lgkmcnt(0)
s_barrier
ds_max_u32 v58, v57
s_waitcnt lgkmcnt(0)
s_barrier
ds_read_b32 v35, v58
s_waitcnt lgkmcnt(0)
v_readfirstlane_b32 s45, v35
s_nop 3
s_add_u32 s45, s45, 4
s_branch G_slowround
G_slownext:
s_waitcnt vmcnt(0) lgkmcnt(0)
s_barrier
s_add_u32 s55, s55, 1
s_cmp_lt_u32 s55, 16
s_cbranch_scc1 G_slowround
s_mov_b32 s55, 0
s_add_u32 s54, s54, 4
s_cmp_ge_u32 s54, s45
s_cbranch_scc1 G_epi
G_slowround:""")
tid()
A(f"""v_lshlrev_b32 v36, 4, v16
v_add_u32 v36, {LISTS}, v36
v_mov_b32 v68, {PAD}
v_mov_b32 v69, {PAD}
v_mov_b32 v70, {PAD}
v_mov_b32 v71, {PAD}
ds_write_b128 v36, v[68:71]
ds_write_b128 v36, v[68:71] offset:4096
v_and_b32 v59, 15, v17
v_lshlrev_b32 v59, 2, v59
v_add_u32 v59, {CNT}, v59
ds_write_b32 v59, v{Z}
s_waitcnt lgkmcnt(0)
s_barrier
s_cmp_lg_u32 s17, s55
s_cbranch_scc1 G_slow2""")
slotload("b")
A(f"""v_mov_b32 v39, 1
v_mov_b32 v58, {CNT}
s_cmp_lg_u32 s54, 0
s_cbranch_scc1 G_slowov""")
insert4(60, "s[40:41]", True)
A(f"""s_branch G_slow2
G_slowov:
s_sub_u32 s34, s54, 4
v_add_u32 v37, s34, v37
v_cmp_lt_u32 s[38:39], v37, v57
s_lshl_b32 s36, s34, 4
s_add_u32 s36, s36, {OVO}
v_mov_b32 v38, 0x40000000
v_cndmask_b32 v56, v38, v56, s[38:39]
s_mov_b32 s34, 0x200000
G_spoll:
buffer_load_dwordx4 v[64:67], v56, s[8:11], s36 offen{SC}
s_waitcnt vmcnt(0)""")
untag(64, 57)
A(f"""s_and_b64 vcc, vcc, s[38:39]
s_cbranch_scc0 G_spolld
s_sub_u32 s34, s34, 1
s_cmp_lg_u32 s34, 0
s_cbranch_scc1 G_spoll
G_spolld:""")
insert4(64, "s[38:39]", False)
A(f"""G_slow2:
s_mul_i32 s34, s17, {CAP*4}
s_add_u32 s34, s34, {LISTS}
v_lshrrev_b32 v50, 3, v17
v_lshlrev_b32 v50, 2, v50
v_add_u32 v{LB}, s34, v50
v_and_b32 v48, 7, v17
v_add_u32 v{LB}, 0x200, v{LB}
v_lshl_add_u32 v{OW}, v48, 5, v{LB}
s_movk_i32 s35, {CAP}
s_waitcnt lgkmcnt(0)
s_barrier
s_branch G_round""")
A('.section .rodata,"a"')
G.kd(NAME, NV, 64)
if opts["trace"]:
    go = G.L.index("G_round:"); done = G.L.index("G_done:")
    out = []
    for i, l in enumerate(G.L):
        if l.startswith("s_memtime") and not (go < i < done):
            if l == "s_memtime s[82:83]": l = "s_memtime s[64:65]"
            elif l == "s_memtime s[86:87]": pass
            else: continue
        out.append(l)
    G.L = out
G.write(OUT)
```
